```python
import torch

def _softmax(x, axis=-1):
    return torch.softmax(x, dim=axis)

def _gelu(x):
    return torch.nn.functional.gelu(x, approximate='tanh')

def _silu(x):
    return torch.nn.functional.silu(x)

def _sigmoid(x):
    return torch.sigmoid(x)

def _layernorm(x, axis=-1, eps=1e-05):
    m = x.mean(dim=axis, keepdim=True)
    v = x.var(dim=axis, keepdim=True, unbiased=False)
    return (x - m) / torch.sqrt(v + eps)

def _scatter_add(tgt, idx, src, axis=0):
    return tgt.clone().index_add_(axis, idx, src)

def _segment_sum(src, seg, n):
    out = torch.zeros((n,) + src.shape[1:], dtype=src.dtype)
    return out.index_add_(0, seg, src)

def _pad(x, pw):
    flat = tuple((v for pair in reversed(pw) for v in pair))
    return torch.nn.functional.pad(x, flat)
kernel_name = 'interleave_layers__memory_aug_recurrent_mem_tr__dense_activation_relu__prompt'

def setup_inputs():

    _w = lambda a: (lambda t: t.to(torch.bfloat16) if t.is_floating_point() else t)(torch.as_tensor(a))

    def _A_setup():
        B, S, Dm = (1, 2048, 640)
        H, Dh = (32, 192)
        M, seg = (8, 32)
        seg = min(seg, S)
        S = S // seg * seg
        return {'x': _w((lambda *s: torch.randn(*s, dtype=torch.bfloat16) * 0.05)(B, S, Dm)), 'mem0': _w((lambda *s: torch.randn(*s, dtype=torch.bfloat16) * 0.8)(B, M, Dm)), 'Wq': _w((lambda *s: torch.randn(*s, dtype=torch.bfloat16) * 0.8)(Dm, H, Dh) * Dm ** (-0.5)), 'Wk': _w((lambda *s: torch.randn(*s, dtype=torch.bfloat16) * 0.8)(Dm, H, Dh) * Dm ** (-0.5)), 'Wv': _w((lambda *s: torch.randn(*s, dtype=torch.bfloat16) * 0.8)(Dm, H, Dh) * Dm ** (-0.5)), 'Wo': _w((lambda *s: torch.randn(*s, dtype=torch.bfloat16) * 0.8)(H, Dh, Dm) * (H * Dh) ** (-0.5)), 'seg_len': seg}
    _A_in = _A_setup()

    def _B_setup():
        B, S, D, Dff = (1, 2048, 640, 1536)
        return {'x': _w((lambda *s: torch.randn(*s, dtype=torch.bfloat16) * 0.05)(B, S, D)), 'w1': _w((lambda *s: torch.randn(*s, dtype=torch.bfloat16) * 0.05)(D, Dff)), 'w2': _w((lambda *s: torch.randn(*s, dtype=torch.bfloat16) * 0.05)(Dff, D))}
    _B_in = _B_setup()
    return {'A_x': _A_in['x'], 'A_mem0': _A_in['mem0'], 'A_Wq': _A_in['Wq'], 'A_Wk': _A_in['Wk'], 'A_Wv': _A_in['Wv'], 'A_Wo': _A_in['Wo'], 'A_seg_len': _A_in['seg_len'], 'B_x': _B_in['x'], 'B_w1': _B_in['w1'], 'B_w2': _B_in['w2']}

def reference(A_x, A_mem0, A_Wq, A_Wk, A_Wv, A_Wo, A_seg_len, B_x, B_w1, B_w2):

    def _A_ref(x, mem0, Wq, Wk, Wv, Wo, seg_len):
        B, S, Dm = x.shape
        H, Dh = (Wq.shape[1], Wq.shape[2])
        M = mem0.shape[1]
        scale = Dh ** (-0.5)
        n_seg = S // seg_len
        L = M + seg_len
        idx = torch.arange(L)
        mask = (idx[:, None] < M) | (idx[:, None] >= idx[None, :])
        mem = mem0
        outs = []
        for s in range(n_seg):
            xs = x[:, s * seg_len:(s + 1) * seg_len, :].clone()
            h = torch.concatenate([mem, xs], axis=1)
            q = torch.einsum('btd,dhe->bhte', h, Wq)
            k = torch.einsum('btd,dhe->bhte', h, Wk)
            v = torch.einsum('btd,dhe->bhte', h, Wv)
            scores = torch.einsum('bhqe,bhke->bhqk', q, k) * scale
            scores = torch.where(mask[None, None], scores, -1000000000.0)
            p = _softmax(scores, axis=-1)
            o = torch.einsum('bhqk,bhke->bhqe', p, v)
            o = torch.einsum('bhte,hed->btd', o, Wo)
            mem = o[:, :M, :].clone()
            outs.append(o[:, M:, :])
        return torch.concatenate(outs, axis=1)

    def _B_ref(x, w1, w2):
        h = torch.einsum('bsd,df->bsf', x, w1)
        zero = torch.zeros_like(h)
        h = torch.maximum(h, zero)
        return torch.einsum('bsf,fd->bsd', h, w2)
    x = A_x
    x = x + _A_ref(_layernorm(x, axis=-1), A_mem0, A_Wq, A_Wk, A_Wv, A_Wo, A_seg_len)
    x = x + _B_ref(_layernorm(x, axis=-1), B_w1, B_w2)
    x = x + _A_ref(_layernorm(x, axis=-1), A_mem0, A_Wq, A_Wk, A_Wv, A_Wo, A_seg_len)
    x = x + _B_ref(_layernorm(x, axis=-1), B_w1, B_w2)
    return x
```

```python
class Asm:
    def __init__(self):
        self.l = []
        self.nl = 0
    def e(self, s):
        for ln in s.split('\n'):
            ln = ln.strip()
            if ln:
                self.l.append(('' if ln.endswith(':') else '  ') + ln)
    __call__ = e
    def c(self, s):
        self.l.append('  ; ' + s)
    def label(self, base='L'):
        self.nl += 1
        return f'{base}_{self.nl}'
    def put(self, lab):
        self.l.append(lab + ':')
    def text(self):
        return '\n'.join(self.l) + '\n'

def v(i, n=1):
    return f'v{i}' if n == 1 else f'v[{i}:{i+n-1}]'
def a(i, n=1):
    return f'a{i}' if n == 1 else f'a[{i}:{i+n-1}]'
def s(i, n=1):
    return f's{i}' if n == 1 else f's[{i}:{i+n-1}]'

def wrap(name, body, launch, vgpr=512, accum=256, sgpr=102, header=''):
    return f'''{header}; @launch {launch}
.amdgcn_target "amdgcn-amd-amdhsa--gfx950"
.text
.globl {name}
.p2align 8
.type {name},@function
{name}:
{body}
.section .rodata,"a"
.p2align 6
.amdhsa_kernel {name}
  .amdhsa_next_free_vgpr {vgpr}
  .amdhsa_next_free_sgpr {sgpr}
  .amdhsa_accum_offset {accum}
  .amdhsa_group_segment_fixed_size 0
  .amdhsa_kernarg_size 104
  .amdhsa_user_sgpr_count 2
  .amdhsa_user_sgpr_kernarg_segment_ptr 1
  .amdhsa_system_sgpr_workgroup_id_x 1
.end_amdhsa_kernel
'''
```

```python
import sys
from asmlib import *
import hz

NAME = 'interleave_layers__memory_aug_recurrent_mem_tr__dense_activation_relu__prompt_kernel'
F_XN, F_X1, F_KM, F_QKV = 0x0, 0x8000, 0x20400, 0x40000
ML, MR, PP, QX, FP, WOP = 0x80000, 0xA0000, 0xC0000, 0x160000, 0x2A0000, 0x520000
CLR_PER_WAVE = 11
XN, XN1, X1, X2, KM, QKVF = 0xB00000, 0x1000000, 0x1500000, 0x1A00000, 0x1D00000, 0x4000000
QKVF_WHICH = 0x3000000
STAMP = 0xD000000
UNIT = 40960
HU = 12288
C_EXP = 0x3dd53b95

class P:
    D = 5; A = 2
    spin = 1 << 20
    force_safe = False
    roles = ('chain', 'att', 'ffn', 'qkv')
    d_lq = 32
    d_red = 3
    d_m = 7
    d_nr = 18
    d_att = 4; d_ffn = 4
    trace = None
    nsteps = None
    noclear = False
    cyc = False
    zoom = []
    solo = False
    d_q1 = 8
    d_c1 = 20
    vx0 = 4
    vxs = 6
    ktail = 6
    x_samekv = False
    x_nokm = False
    series = False
    fk_late = False
    stamps = range(8)

WS, DBG, INP = 's[4:7]', 's[8:11]', 's[12:15]'
sW, sX, sR, sTK, sSPIN = 's3', 's42', 's43', 's44', 's45'
PTR = dict(x=16, mem0=18, wq=20, wk=22, wv=24, wo=26, w1=32, w2=34, out=36, dbg=38, ws=40)

class G(Asm):
    def __init__(self, p, safe):
        super().__init__(); self.p = p; self.safe = safe
        self.loc = 'sc1' if safe else ''
        self.sfx = 'S' if safe else 'F'
    def label(self, base='L'):
        self.nl += 1
        return f'{base}{self.sfx}_{self.nl}'
    def srd(self, name, size, srd=12):
        b = PTR[name]
        self(f's_mov_b32 s{srd}, s{b}\ns_and_b32 s{srd+1}, s{b+1}, 0xffff\ns_mov_b32 s{srd+2}, {size}\ns_mov_b32 s{srd+3}, 0x20000')
    def mfma(self, d, x, y, c=None, k=32):
        self(f'v_mfma_f32_16x16x{k}_bf16 {d}, {x}, {y}, {d if c is None else c}')
    def spin(self, fail):
        self(f's_add_u32 {sSPIN}, {sSPIN}, 1\ns_cmp_gt_u32 {sSPIN}, {self.p.spin}\ns_cbranch_scc1 {fail}')
    def tagcheck(self, loads, dws, stag, vt, fail, younger=0, mask=None, issue=None):
        L = self.label('chk'); Lok = self.label('ok')
        self(f's_waitcnt vmcnt({younger})')
        self.put(L)
        first = True
        for d, t, w in loads:
            for k in dws:
                if k >= w: continue
                if first: self(f'v_xor_b32 {vt}, {stag}, v{d+k}'); first = False
                else: self(f'v_bitop3_b32 {vt}, {vt}, v{d+k}, {stag} bitop3:0xf6')
        self(f'v_and_b32 {vt}, 1, {vt}\nv_cmp_ne_u32 vcc, 0, {vt}')
        if mask: self(f's_and_b64 vcc, vcc, {mask}')
        self(f's_cbranch_vccz {Lok}')
        for d, t, w in loads: self(t)
        self.spin(fail)
        self(f's_waitcnt vmcnt(0)\ns_branch {L}')
        self.put(Lok)
    def flagwait(self, load, regs, fail, pre_issued=False, younger=0, sleep=0):
        L = self.label('fw'); Lok = self.label('fo'); Lc = self.label('fc')
        if pre_issued:
            self(f's_waitcnt vmcnt({younger})\ns_branch {Lc}')
        self.put(L)
        self(load + '\ns_waitcnt vmcnt(0)')
        self.put(Lc)
        r = regs[0]
        if len(regs) == 2:
            self(f'v_min_u32 {regs[0]}, {regs[0]}, {regs[1]}')
        self(f'v_cmp_eq_u32 vcc, 0, {r}\ns_cbranch_vccz {Lok}')
        self.spin(fail)
        if sleep: self(f's_sleep {sleep}')
        self(f's_branch {L}')
        self.put(Lok)

def weave(g, mf, fill, start=0, per=1):
    fill = list(fill)
    for i, m in enumerate(mf):
        g(m)
        if i >= start:
            for _ in range(per):
                if fill: g(fill.pop(0))
    for f in fill: g(f)

def weight_pipe(g, pieces, lds_lo, lds_hi, after_first_barrier=None):
    n = len(pieces)
    pos = lds_lo; slots = []
    for pc in pieces:
        if pos + pc['size'] > lds_hi: pos = lds_lo
        slots.append(pos); pos += pc['size']
    def overlaps(i, j):
        return slots[i] < slots[j] + pieces[j]['size'] and slots[j] < slots[i] + pieces[i]['size']
    issued = 0; counts = []
    def issue(j):
        pc = pieces[j]
        if pc.get('pre'): g(pc['pre'])
        for (vr, so, adj, lo) in pc['dma']:
            if adj: g(f's_add_u32 s46, {adj}, {so}')
            else: g(f's_mov_b32 s46, {so}')
            g(f's_add_u32 m0, {pc["wl"]}, {slots[j] + lo}\ns_nop 0')
            g(f'buffer_load_dwordx4 {vr}, {pc["srd"]}, s46 offen lds')
        counts.append(len(pc['dma']))
    def can_issue(j, consumed):
        if sum(counts[consumed:]) + len(pieces[j]['dma']) > 60: return False
        return all(not overlaps(i, j) for i in range(consumed, j))
    while issued < n and can_issue(issued, 0): issue(issued); issued += 1
    for i in range(n):
        g(f's_waitcnt vmcnt({sum(counts[i+1:])})\ns_barrier')
        if i == 0 and after_first_barrier: after_first_barrier()
        while issued < n and can_issue(issued, i): issue(issued); issued += 1
        assert issued > i
        for k, t in enumerate(pieces[i]['reads'](slots[i])):
            if k == 12: g('s_waitcnt lgkmcnt(4)')
            g(t)
        g('s_waitcnt lgkmcnt(0)')
    g('s_barrier')

def dma_offsets(g, dst, nreg, rowbytes, stride, rows_per_wave, tmp):
    magic = (1 << 20) // (rowbytes // 16) + 1
    for j in range(nreg):
        g(f'v_add_u32 v{tmp}, {64*j}, v0')
        g(f'v_mul_u32_u24 v{tmp+1}, {magic}, v{tmp}\nv_lshrrev_b32 v{tmp+1}, 20, v{tmp+1}')
        g(f'v_mul_u32_u24 v{tmp+2}, {rowbytes//16}, v{tmp+1}\nv_sub_u32 v{tmp}, v{tmp}, v{tmp+2}\nv_lshlrev_b32 v{tmp}, 4, v{tmp}')
        g(f'v_mul_u32_u24 v{tmp+1}, {stride}, v{tmp+1}\nv_add_u32 v{dst+j}, v{tmp}, v{tmp+1}')
        for l in range(64):
            o = 64*j + l
            assert (o * magic) >> 20 == o // (rowbytes // 16)
    g(f's_mul_i32 s46, {sW}, {rows_per_wave*stride}')
    for j in range(nreg): g(f'v_add_u32 v{dst+j}, s46, v{dst+j}')

def tr_bases(g, dst, rowmul, rowbytes, cmul, tmp):
    g(f'v_lshrrev_b32 v{tmp}, 4, v0\nv_mul_u32_u24 v{tmp}, {rowmul}, v{tmp}\nv_bfe_u32 v{tmp+1}, v0, 2, 2\nv_add_u32 v{tmp}, v{tmp}, v{tmp+1}')
    g(f'v_mul_u32_u24 v{tmp}, {rowbytes}, v{tmp}\nv_and_b32 v{tmp+1}, 3, v0\nv_mul_u32_u24 v{tmp+1}, {cmul}, v{tmp+1}\nv_add_u32 v{dst}, v{tmp}, v{tmp+1}')
def tr_finish(g, dst, sadd):
    g(f'v_add_u32 v{dst}, {sadd}, v{dst}\nv_add_u32 v{dst+1}, 0x10000, v{dst}\nv_add_u32 v{dst+2}, 0x20000, v{dst}')
def tr(dreg, base, off):
    return f'ds_read_b64_tr_b16 {dreg}, v{base + (off >> 16)} offset:{off & 0xffff}'
def reg2(kind, i): return f'{kind}[{i}:{i+1}]'
def reg4(kind, i): return f'{kind}[{i}:{i+3}]'

def arrive(g):
    if g.safe: return
    L = g.label('arr')
    g(f's_cmp_eq_u32 {sW}, 0\ns_cbranch_scc0 {L}')
    g(f's_mov_b64 exec, 1\nv_mov_b32 v150, 140\nv_mov_b32 v149, 1\nbuffer_atomic_add v149, v150, {DBG}, 0 offen sc0 sc1\ns_mov_b64 exec, -1')
    g.put(L)

def gridsync(g, fail):
    if g.safe: return
    L = g.label('gs'); Lok = g.label('gsok'); Lb = g.label('bal')
    g(f's_waitcnt vmcnt(0)\nv_readfirstlane_b32 {sTK}, v149\nv_mov_b32 v150, 0')
    for l, o in enumerate((0, 64, 128, 132, 136, 192, 196, 200, 140)):
        if o: g(f's_mov_b32 s46, {o}\nv_writelane_b32 v150, s46, {l}')
    g('s_mov_b64 exec, 0x1ff')
    g.put(L)
    g(f'buffer_load_dword v151, v150, {DBG}, 0 offen sc1\ns_waitcnt vmcnt(0)\ns_nop 0\nv_readlane_b32 s46, v151, 8\ns_cmp_ge_u32 s46, 256\ns_cbranch_scc1 {Lok}')
    g.spin(fail)
    g(f's_sleep 4\ns_branch {L}')
    g.put(Lok)
    g(f'buffer_load_dword v151, v150, {DBG}, 0 offen sc1\ns_waitcnt vmcnt(0)\ns_mov_b64 exec, 0xff\nv_cmp_ne_u32 vcc, 32, v151\ns_mov_b64 exec, -1')
    if not g.p.force_safe:
        g(f's_cbranch_vccz {Lb}')
    Lp = g.label('pc')
    g(f's_getpc_b64 s[46:47]\n{Lp}:\ns_add_u32 s46, s46, L_SAFE-{Lp}\ns_addc_u32 s47, s47, 0\ns_setpc_b64 s[46:47]')
    g.put(Lb)

def consts_sel(g, vONE, vSEL2, tmp):
    g(f'v_and_b32 v{tmp}, 1, v0\nv_lshlrev_b32 v{tmp}, 4, v{tmp}\nv_mov_b32 v{tmp+1}, 0x3f80\nv_lshlrev_b32 v{tmp}, v{tmp}, v{tmp+1}')
    g(f'v_bfe_u32 v{tmp+1}, v0, 1, 2')
    for j in range(4):
        g(f'v_cmp_eq_u32 vcc, {j}, v{tmp+1}\ns_nop 1\nv_cndmask_b32 v{vONE+j}, 0, v{tmp}, vcc')
    if vSEL2 is not None:
        for j in range(4): g(f'v_cndmask_b32 v{vSEL2+j}, 0, v{vONE+j}, s[50:51]')

def masks(g):
    g('s_mov_b32 s48, 0x00ff00ff\ns_mov_b32 s49, 0x00ff00ff')
    g('s_mov_b32 s50, 0x00ff00ff\ns_mov_b32 s51, 0xff00ff00')

def fail_exit(g, lab, code):
    g.put(lab)
    g(f's_mov_b64 exec, 1\nv_mov_b32 v150, 224\nv_mov_b32 v151, {code}\nbuffer_atomic_or v151, v150, {DBG}, 0 offen sc1\ns_endpgm')

def role_chain(g):
    p = g.p; D = p.D; NS = p.nsteps or (64 + D)
    FAIL = g.label('failc')
    sH, sC, sCU = 's52', 's53', 's54'
    g(f's_lshr_b32 {sH}, {sR}, 1\ns_lshl_b32 s46, {sX}, 4\ns_add_u32 {sH}, {sH}, s46\ns_and_b32 {sC}, {sR}, 1\ns_lshl_b32 {sCU}, {sX}, 5\ns_add_u32 {sCU}, {sCU}, {sR}')
    dA, dB, tA, tB, tB5 = 16, 20, 26, 29, 32
    dma_offsets(g, dA, 3, 384, 12288, 8, 40)
    g(f's_mul_i32 s46, {sC}, {320*12288}\ns_mul_i32 s47, {sH}, 384\ns_add_u32 s46, s46, s47')
    for j in range(3): g(f'v_add_u32 v{dA+j}, s46, v{dA+j}')
    dma_offsets(g, dB, 5, 640, 1280, 8, 40)
    g(f's_mul_i32 s46, {sH}, {192*1280}\ns_mul_i32 s47, {sC}, 640\ns_add_u32 s46, s46, s47')
    for j in range(5): g(f'v_add_u32 v{dB+j}, s46, v{dB+j}')
    tr_bases(g, tA, 8, 384, 8, 40); g(f's_mul_i32 s46, {sW}, 96'); tr_finish(g, tA, 's46')
    tr_bases(g, tB, 4, 640, 16, 40); g(f's_lshl_b32 s46, {sW}, 7'); tr_finish(g, tB, 's46')
    tr_bases(g, tB5, 4, 640, 8, 40); g(f's_lshl_b32 s46, {sW}, 5\ns_add_u32 s46, s46, 512'); tr_finish(g, tB5, 's46')
    g(f's_mul_i32 s55, {sW}, 3072\ns_mul_i32 s56, {sW}, 5120\ns_lshr_b32 s57, {sW}, 1\ns_mul_i32 s57, s57, {32*1280}')
    for k, nm in enumerate(('wq', 'wk', 'wv', 'wo')): g.srd(nm, 7864320, 60 + 4*k)
    def wo_reg(tile, ks):
        i = tile*6 + ks
        return ('a', 240 + 4*i) if i < 4 else ('v', 152 + 4*(i-4))
    pcs = []
    def pa(srd, ks, dst):
        def reads(slot):
            out = []
            for t in range(3):
                k, b = dst(t, ks)
                out += [tr(reg2(k, b), tA, slot + 32*t), tr(reg2(k, b+2), tA, slot + 32*t + 4*384)]
            return out
        return dict(size=12288, wl='s55', srd=srd, dma=[(f'v{dA+j}', ks*32*12288, None, 1024*j) for j in range(3)], reads=reads)
    for ks in range(10): pcs.append(pa('s[60:63]', ks, lambda t, ks: ('a', (t*10 + ks)*4)))
    for ks in range(10): pcs.append(pa('s[64:67]', ks, lambda t, ks: ('a', ((3+t)*10 + ks)*4)))
    for ks in range(6):
        ta = (0, 3, 6, 9, 2, 8)[ks]
        def reads(slot, ks=ks):
            out = []
            for t in range(5):
                k, b = wo_reg(t, ks)
                base, off = (tB, 64*(t >> 1) + 8*(t & 1)) if t < 4 else (tB5, 0)
                out += [tr(reg2(k, b), base, slot + off), tr(reg2(k, b+2), base, slot + off + 16*640)]
            return out
        pcs.append(dict(size=20480, wl='s56', srd='s[72:75]', dma=[(f'v{dB+j}', ta*16*1280, 's57' if ks >= 4 else None, 1024*j) for j in range(5)], reads=reads))
    WVT = 36
    for ks in range(10): pcs.append(pa('s[68:71]', ks, lambda t, ks: ('v', 36 + (ks*3 + t)*4) if (ks*3+t) < 28 else ('v', 4 + (ks*3 + t - 28)*4)))
    weight_pipe(g, pcs, 0, 163840, after_first_barrier=lambda: arrive(g))
    g(f's_mul_i32 s46, {sW}, 30720\nv_lshlrev_b32 v1, 4, v0\nv_add_u32 v2, s46, v1')
    for i in range(30):
        b = 36 + i*4 if i < 28 else 4 + (i-28)*4
        g(f'ds_write_b128 v2, {reg4("v", b)} offset:{1024*i}')
    g('s_waitcnt lgkmcnt(0)')
    L16, L8, MG, MW, RD, RS, SW, OW1, OW2, WV, LM, FL, FD, VT = range(1, 15)
    ONE, SEL2 = 16, 20
    M, QK, VA, KX, WT, ST = 24, 64, 88, 100, 124, 148
    LB, LOB, LSB, LMB = 122880, 34816, 8192, 24576
    g(f'v_mov_b32 v{WV}, v2\nv_lshlrev_b32 v{L8}, 3, v0\nv_add_u32 v{LM}, {LB}, v1')
    g.srd('mem0', 10240)
    masks(g); consts_sel(g, ONE, SEL2, 30)
    g(f'v_lshrrev_b32 v30, 5, v0\nv_lshlrev_b32 v30, 8, v30\nv_and_b32 v31, 15, v0\nv_lshlrev_b32 v31, 4, v31\nv_add_u32 v30, v30, v31')
    g(f's_mul_i32 s46, {sW}, 2560\nv_add_u32 v30, s46, v30\nv_bfe_u32 v32, v0, 4, 1')
    g(f'v_lshlrev_b32 v33, 3, v32\nv_add_u32 v{MW}, v30, v33\nv_add_u32 v{MW}, {LB+LMB}, v{MW}')
    g(f's_mul_i32 s46, {sX}, 40960\ns_add_u32 s46, s46, {ML}\ns_mul_i32 s47, {sC}, 10240\ns_add_u32 s46, s46, s47')
    g(f's_xor_b32 s58, {sX}, 1\ns_mul_i32 s58, s58, 40960\ns_add_u32 s58, s58, {MR}\ns_add_u32 s58, s58, s47\ns_sub_u32 s58, s58, s46')
    g(f'v_mul_lo_u32 v32, s58, v32\nv_add_u32 v{MG}, v30, v32\nv_add_u32 v{MG}, s46, v{MG}')
    g(f'v_lshrrev_b32 v32, 4, v0\nv_mul_u32_u24 v{RD}, 20480, v32\nv_add_u32 v{RD}, v{RD}, v31')
    g(f'v_bfe_u32 v32, v0, 4, 1\nv_lshlrev_b32 v32, 30, v32\nv_lshrrev_b32 v33, 5, v0\nv_lshlrev_b32 v33, 8, v33\nv_add3_u32 v{RS}, v31, v32, v33')
    g(f's_lshl_b32 s46, {sW}, 12\ns_add_u32 s46, s46, {LSB}\nv_add_u32 v{SW}, s46, v{LM}')
    g(f's_lshl_b32 s46, {sW}, 10\nv_add_u32 v{OW1}, s46, v{LM}')
    g(f's_add_u32 s28, s46, {LB}\ns_add_u32 s29, s46, {LB+4096-1024}\ns_lshl_b32 s30, {sW}, 12\ns_add_u32 s30, s30, {LB+LSB+3072-2048}')
    g(f's_lshr_b32 s46, {sW}, 1\ns_lshl_b32 s46, s46, 10\ns_and_b32 s47, {sW}, 1\ns_lshl_b32 s47, s47, 3\ns_add_u32 s46, s46, s47\ns_add_u32 s59, s46, {LOB+4096}\nv_add_u32 v{OW2}, s59, v{LM}')
    sQO, sQT, sPP, sPH, sRD, sRL, sRR, sQ, sKM, sFK = 's60', 's61', 's62', 's63', 64, 's68', 's69', 's70', 's71', 's72'
    sK1, sK2, sV1, sV2, sST, sTG, sMT, sMS, sU1, sU2, sKB, sT0, sT1 = 's73', 's74', 's75', 's76', 's77', 's78', 's79', 's80', 's81', 's82', 's83', 's84', 's85'
    sD0, sD1, sCE, sNI, sN1 = 's86', 's87', 's88', 's89', 's55'
    g(f's_lshl_b32 {sQO}, {sCU}, 2\ns_add_u32 {sQO}, {sQO}, {sW}\ns_xor_b32 {sQT}, {sQO}, 4\ns_mul_i32 {sQO}, {sQO}, 5120\ns_add_u32 {sQO}, {sQO}, {QX}\ns_mul_i32 {sQT}, {sQT}, 5120\ns_add_u32 {sQT}, {sQT}, {QX}')
    g(f's_mul_i32 {sPP}, {sCU}, 10240\ns_add_u32 {sPP}, {sPP}, {PP}\ns_lshl_b32 s46, {sW}, 9\ns_add_u32 {sPH}, {sPP}, s46\ns_add_u32 {sPH}, {sPH}, 8192\ns_lshl_b32 s46, {sW}, 11\ns_add_u32 {sPP}, {sPP}, s46')
    g(f's_lshl_b32 {sQ}, {sW}, 5\ns_add_u32 {sQ}, {sQ}, {sR}\ns_cmp_ge_u32 {sQ}, 40\ns_cselect_b32 s46, 10240-40*256, 0\ns_lshl_b32 s47, {sQ}, 8\ns_add_u32 s47, s47, s46')
    g(f's_mul_i32 s46, {sX}, 327680\ns_add_u32 s46, s46, s47\ns_add_u32 s{sRD}, s46, {PP}')
    for i in range(1, 4): g(f's_add_u32 s{sRD+i}, s{sRD+i-1}, 81920')
    g(f's_mul_i32 s46, {sX}, 40960\ns_add_u32 s46, s46, s47\ns_add_u32 {sRL}, s46, {ML}\ns_add_u32 {sRR}, s46, {MR}')
    g(f's_mul_i32 {sKM}, {sH}, {HU}\ns_mul_i32 s46, {sC}, 6144\ns_add_u32 {sKM}, {sKM}, s46\ns_mul_i32 s46, {sW}, 1536\ns_add_u32 {sKM}, {sKM}, s46\ns_add_u32 {sKM}, {sKM}, {KM}')
    g(f's_lshl_b32 {sFK}, {sH}, 5\ns_lshl_b32 s46, {sC}, 4\ns_add_u32 {sFK}, {sFK}, s46\ns_lshl_b32 s46, {sW}, 2\ns_add_u32 {sFK}, {sFK}, s46\ns_add_u32 {sFK}, {sFK}, {F_KM}')
    g(f's_mul_i32 {sKB}, {sH}, {HU}\ns_mul_i32 s46, {sW}, 3072\ns_add_u32 {sKB}, {sKB}, s46\ns_add_u32 {sKB}, {sKB}, {QKVF + QKVF_WHICH}')
    g(f'v_and_b32 v30, 1, v0\nv_lshlrev_b32 v30, 4, v30\ns_lshl_b32 s46, {sH}, 6\ns_lshl_b32 s47, {sW}, 2\ns_add_u32 s46, s46, s47\ns_add_u32 s46, s46, {F_QKV+16}\nv_add_u32 v15, s46, v30')
    g(f's_mov_b32 {sD0}, 0x00003f80\ns_mov_b32 {sD1}, 0x3f800000\ns_mov_b32 {sCE}, {C_EXP}\ns_mov_b32 {sNI}, 0xff800000\ns_mov_b32 s56, 0x33333333\ns_mov_b32 s57, 0x33333333')
    gridsync(g, FAIL)

    FLD = f'buffer_load_dword v{FD}, v{FL}, {WS}, 0 offen sc1'
    def units(st):
        if p.x_samekv: st = '0'
        return [f's_min_u32 {sU1}, {st}, 63', f's_add_u32 {sU2}, {st}, {64-D}', f's_cmp_lt_u32 {st}, {D}', f's_cselect_b32 {sU2}, {sU1}, {sU2}',
                f's_lshl_b32 s46, {sU1}, 11', f's_lshl_b32 s47, {sU2}, 11', f'v_mov_b32 v{FL}, s47', f'v_mov_b32 v{FD}, s46',
                f'v_cndmask_b32 v{FL}, v{FL}, v{FD}, s[56:57]', f'v_add_u32 v{FL}, v{FL}, v15',
                f's_mul_i32 {sK1}, {sU1}, {32*HU}', f's_add_u32 {sK1}, {sK1}, {sKB}', f's_mul_i32 {sK2}, {sU2}, {32*HU}', f's_add_u32 {sK2}, {sK2}, {sKB}']
    def kx_loads():
        return [f'buffer_load_dwordx4 {reg4("v", KX + 12*c + 4*j)}, v{L16}, {WS}, {(sK1, sK2)[c]} offen offset:{1024*j} sc1' for c in range(2) for j in range(3)]
    def mem0_to_lds(lanes_hi_only):
        g(f'v_and_b32 v30, 7, v0\nv_mul_u32_u24 v30, 1280, v30\nv_lshrrev_b32 v31, 4, v0\nv_lshlrev_b32 v31, 4, v31\nv_add_u32 v30, v30, v31')
        g(f's_mul_i32 s46, {sC}, 640\ns_lshl_b32 s47, {sW}, 6\ns_add_u32 s46, s46, s47\nv_add_u32 v30, s46, v30\ns_lshl_b32 s46, {sW}, 10\nv_add_u32 v31, s46, v{LM}')
        for j in range(3): g(f'buffer_load_dwordx4 {reg4("v", QK+4*j)}, v30, {INP}, 0 offen offset:{256*j}')
        g('s_waitcnt vmcnt(0)')
        if lanes_hi_only: g('s_not_b64 exec, s[48:49]')
        for j in range(2): g(f'ds_write_b128 v31, {reg4("v", QK+4*j)} offset:{LMB+4096*j}')
        L = g.label('m0')
        g(f's_cmp_ge_u32 {sW}, 2\ns_cbranch_scc1 {L}\nds_write_b128 v31, {reg4("v", QK+8)} offset:{LMB+8192}')
        g.put(L)
        g('s_mov_b64 exec, -1')
    def mark(name):
        if p.trace is not None and name in p.zoom: stamp(p.zoom.index(name), True)
    def stamp(k, force=False):
        if p.trace is None or (k not in p.stamps and not force) or (p.zoom and not force): return
        L = g.label('tr')
        ins = 's_memtime' if p.cyc else 's_memrealtime'
        g(f's_cmp_eq_u32 {sST}, {p.trace}\ns_cbranch_scc0 {L}\n{ins} s[98:99]\ns_waitcnt lgkmcnt(0)\ns_mov_b32 s{90+k}, s98')
        g.put(L)
    if p.trace is not None:
        for k in range(11): g(f's_mov_b32 s{90+k}, 0')
        g('s_mov_b32 s0, 0\ns_mov_b32 s1, 0\ns_mov_b32 s2, 0\ns_mov_b32 s44, 0')
        g('s_memrealtime s[46:47]\ns_waitcnt lgkmcnt(0)\ns_mov_b32 s100, s46\ns_memtime s[46:47]\ns_waitcnt lgkmcnt(0)\ns_mov_b32 s59, s46')
    def tagops(dw, stag):
        dw = list(dw); o = []
        if len(dw) % 2 == 0:
            o.append(f'v_bitop3_b32 v{VT}, v{dw[0]}, v{dw[1]}, {stag} bitop3:0x7e'); dw = dw[2:]
        else:
            o.append(f'v_xor_b32 v{VT}, {stag}, v{dw[0]}'); dw = dw[1:]
        for d in dw: o.append(f'v_bitop3_b32 v{VT}, v{VT}, v{d}, {stag} bitop3:0xf6')
        o += [f'v_and_b32 v{VT}, 1, v{VT}', f'v_cmp_ne_u32 vcc, 0, v{VT}']
        return o
    RETRY = []; KW = []
    def retry(loads, back):
        L = g.label('rt'); g(f's_cbranch_vccnz {L}' if not p.solo else 's_nop 0'); RETRY.append((L, loads, back))
    def cvt(d, a_): return f'v_cvt_pk_bf16_f32 v{d}, v{a_}, v{a_+1}'
    def tag(d, st): return f'v_bfi_b32 v{d}, 1, {st}, v{d}'

    g(f's_mov_b32 {sST}, 0\ns_mov_b32 {sTG}, 1')
    for t in units(sST): g(t)
    g.flagwait(FLD, [f'v{FD}'], FAIL, sleep=2)
    for t in kx_loads(): g(t)
    mem0_to_lds(False)
    LSTEP, LP1, LEND = g.label('step'), g.label('p1'), g.label('cend')
    g(f's_branch {LP1}')
    g('.p2align 6')
    g.put(LSTEP)
    GL, GA = M, QK
    ml = [f'buffer_load_dwordx4 {reg4("v", GL+4*i)}, v{MG}, {WS}, {sMS} offen offset:{512*i} sc1' for i in range(5)]
    for t in ml: g(t)
    g('s_waitcnt vmcnt(0)')
    Lb = g.label('b'); g.put(Lb)
    weave(g, [f'v_mfma_f32_16x16x32_bf16 {reg4("v", GA+4*i)}, {reg4("v", SEL2)}, {reg4("v", GL+4*i)}, 0' for i in range(5)],
          tagops([GL + 4*i for i in range(5)], sMT), per=1)
    retry(ml, Lb)
    stamp(0); mark('s0')
    g('s_nop 0')
    for i in range(5):
        g(cvt(GL+2*i, GA+4*i)); g(cvt(GL+2*i+1, GA+4*i+2))
        g(f'ds_write_b64 v{MW}, {reg2("v", GL+2*i)} offset:{512*i}')
    mark('p0w')
    g(f's_cmp_eq_u32 {sST}, {D}\ns_cbranch_scc1 {LP1}x')
    g.put(LP1)
    g('s_waitcnt lgkmcnt(0)\ns_barrier')
    mark('p0b')
    for i in range(10): g(f'ds_read_b128 {reg4("v", M+4*i)}, v{LM} offset:{LMB+1024*i}')
    Q = [M + 4*f for f in range(10)]
    G1, G0T, G2T, G1T = Q[5], Q[6], Q[7], Q[0]
    G2 = ST
    def qk(t, ks): return f'v_mfma_f32_16x16x32_bf16 {reg4("v", QK+4*t)}, {reg4("a", (t*10+ks)*4)}, {reg4("v", M+4*ks)}, ' + (reg4("v", QK+4*t) if ks else '0')
    def pack(ta, tb, dst, j):
        A_, B_ = QK + 4*ta, QK + 4*tb
        return [cvt(dst, A_), cvt(dst+1, A_+2), cvt(dst+2, B_), cvt(dst+3, B_+2), tag(dst, sTG),
                f'buffer_store_dwordx4 {reg4("v", dst)}, v{L16}, {WS}, {sQO} offen offset:{1536+1024*j} {g.loc}']
    def addp(acc, src):
        return [f'v_dot2_f32_bf16 v{acc+r}, v{src + (r >> 1)}, {(sD0, sD1)[r & 1]}, v{acc+r}' for r in range(4)]
    VX = WT
    vx = [f'buffer_load_dwordx4 {reg4("v", VX+4*j)}, v{L16}, {WS}, {sV1} offen offset:{1024*j} sc1' for j in range(3)]
    vx += [f'buffer_load_dwordx4 v{L16}, {WS}, {sV2} offen offset:{1024*j} sc1 lds' for j in range(3)]
    seq = [qk(t, ks) for pr in ((0, 1), (2, 5), (3, 4)) for ks in range(10) for t in pr]
    fill = {i: [] for i in range(60)}
    for j, t in enumerate(pack(0, 1, ST, 0)): fill[27 + j].append(t)
    for j, t in enumerate(pack(2, 5, G2, 2)): fill[47 + j].append(t)
    fill[0].append(f's_add_u32 {sV1}, {sK1}, {QKVF_WHICH}'); fill[1].append(f's_add_u32 {sV2}, {sK2}, {QKVF_WHICH}'); fill[2].append(f's_add_u32 {sN1}, {sST}, 1')
    posb = [x for x in range(p.vx0, 60, p.vxs) if not (27 <= x < 33 or 47 <= x < 53)]
    for j, t in enumerate(vx):
        fill[posb[j]].append(t)
        if j >= 3: fill[posb[j] - 1].append(f's_mov_b32 m0, s{28 + j - 3}')
    un = units(sN1) + [FLD]
    for x in range(5, 47):
        if un and not fill[x] and (x >= 20 or x % 2 == 0): fill[x].append(un.pop(0))
    assert not un
    order = [6, 7, 8, 9, 0, 1, 2, 3, 4, 5]
    items = []
    for ks in order:
        if ks < 6: items.append(('m', ks))
        items += [('w', 3*ks + t) for t in range(3)]
    use = {}
    for n, ks in enumerate(order):
        use[('m', ks)] = (3*n, 3*n + 2)
        for t in range(3): use[('w', 3*ks + t)] = (3*n + t, 3*n + t)
    free_at = {Q[f]: -1 for f in range(5)}
    for f in range(3): free_at[WT + 12 + 4*f] = -1
    for f in (8, 9): free_at[Q[f]] = use[('m', f)][1]
    loc = {('m', f): Q[f] for f in range(6, 10)}; issue_after = {}
    for n, it in enumerate(items):
        lastuse = use[it][1]
        t_, r = sorted((fa, r) for r, fa in free_at.items() if not (r == G1T and lastuse >= min(p.d_lq, 30)))[0]
        if n: t_ = max(t_, issue_after[items[n-1]])
        loc[it] = r; issue_after[it] = t_; free_at[r] = lastuse
        assert t_ < use[it][0]
    def rd(it):
        return f'ds_read_b128 {reg4("v", loc[it])}, ' + (f'v{WV} offset:{1024*it[1]}' if it[0] == 'w' else f'v{LM} offset:{LMB+1024*it[1]}')
    pre = [it for it in items if issue_after[it] < 0]
    for j, it in enumerate(pre): fill[60 - len(pre) - 1 + j].append(rd(it))
    for i, m_ in enumerate(seq):
        if i in (20, 40): mark(f'qk{i}')
        if i < 20 and i % 2 == 0: g(f's_waitcnt lgkmcnt({9 - i//2})')
        g(m_)
        for x in fill[i]: g(x)
    stamp(1); mark('s1')
    def lqld(dst, j): return f'buffer_load_dwordx4 {reg4("v", dst)}, v{L16}, {WS}, {sQT} offen offset:{1536+1024*j} sc1'
    lq1 = [lqld(G0T, 0), lqld(G2T, 2)]; lq2 = [lqld(G1T, 1)]
    QS, Q2 = QK, QK + 4
    extra = {i: [] for i in range(48)}
    for j, t in enumerate(pack(3, 4, G1, 1)): extra[2 + j].append(t)
    extra[p.d_q1].append(lq1[0]); extra[p.d_q1 + 1].append(lq1[1])
    extra[p.d_lq].append(lq2[0])
    qsum = addp(QK, G0T) + addp(QK+4, G0T+2) + addp(QK+8, G2T) + [cvt(QS, QK), cvt(QS+1, QK+2), cvt(QS+2, QK+4), cvt(QS+3, QK+6), cvt(Q2, QK+8), cvt(Q2+1, QK+10)]
    issued = list(pre)
    for i in range(30):
        n, t = divmod(i, 3); ks = order[n]
        if t == 0:
            need = max(k for k, it in enumerate(items) if use[it][0] <= i + 2)
            assert need < len(issued)
            g(f's_waitcnt lgkmcnt({len(issued) - 1 - need})')
        g.mfma(reg4('v', VA+4*t), reg4('v', loc[('m', ks)]), reg4('v', loc[('w', 3*ks + t)]), None if n else 0)
        for it in items:
            if issue_after[it] == i: g(rd(it)); issued.append(it)
        for x in extra[i]: g(x)
        if i == p.d_c1:
            mark('c1a')
            g(f's_waitcnt vmcnt({1 if p.d_lq <= i else 0})')
            Lb = g.label('b'); g.put(Lb)
            for x in tagops([G0T, G2T], sTG): g(x)
            retry(lq1, Lb); mark('c1b')
        if i > p.d_c1:
            for _ in range(2):
                if qsum: g(qsum.pop(0))
    for t in qsum: g(t)
    mark('vend')
    X1a, X1b, X2a, X2b, SM = Q[1], Q[2], Q[3], Q[4], Q[6]
    VOP = [Q[8], Q[9], QK+8]
    T1, T2, T3 = QK + 6, QK + 7, VT
    def m32(d, a_, b_, first=False): return f'v_mfma_f32_16x16x32_bf16 {reg4("v", d)}, {reg4("v", a_)}, {reg4("v", b_)}, ' + ('0' if first else reg4("v", d))
    def m16(d, a_, b_, first=False): return f'v_mfma_f32_16x16x16_bf16 {reg4("v", d)}, {reg2("v", a_)}, {reg2("v", b_)}, ' + ('0' if first else reg4("v", d))
    sq = [m16(SM, G2+2, Q2, True), m16(SM, G2T+2, Q2), m16(X1a, KX+8, Q2, True), m16(X2a, KX+20, Q2, True), m16(X1b, KX+10, Q2, True), m16(X2b, KX+22, Q2, True),
          m32(SM, G1, QS), m32(X1a, KX, QS), m32(X2a, KX+12, QS), m32(X1b, KX+4, QS), m32(X2b, KX+16, QS)]
    hp = [f'v_xor_b32 v{T1}, 0x1000, v{SW}', f'v_xor_b32 v{T2}, 0x2000, v{SW}', f's_cmp_eq_u32 {sC}, 0']
    for j in range(3): hp += [cvt(VOP[j], VA+4*j), cvt(VOP[j]+1, VA+4*j+2), tag(VOP[j], sTG), f'buffer_store_dwordx2 {reg2("v", VOP[j])}, v{L8}, {WS}, {sQO} offen offset:{512*j} {g.loc}']
    g('s_nop 1')
    for i, m_ in enumerate(sq):
        g(m_)
        for x in extra[30 + i]: g(x)
        for _ in range(1 if i < 4 else 2):
            if hp: g(hp.pop(0))
    for t in hp: g(t)
    mark('sqend')
    f2 = [f'v_cndmask_b32 v{X1a+r}, v{X2a+r}, v{X1a+r}, s[48:49]' for r in range(8)]
    g('s_nop 2')
    for t in f2[:4]: g(t)
    g(f'ds_write_b128 v{SW}, {reg4("v", X1a)}')
    for t in f2[4:]: g(t)
    g(f'ds_write_b128 v{SW}, {reg4("v", X1b)} offset:1024')
    stamp(2); mark('s2')
    tx = g.l[next(k for k in range(len(g.l) - 1, -1, -1) if lq2[0] in g.l[k]) + 1:]
    g(f's_waitcnt vmcnt({sum(1 for x in tx if x.strip().startswith("buffer_"))})')
    Lb = g.label('b'); g.put(Lb)
    for t in tagops([G1T], sTG): g(t)
    retry(lq2, Lb)
    stamp(3); mark('s3')
    if p.trace is not None or True: pass
    lv = [f'buffer_load_dwordx2 {reg2("v", VOP[j]+2)}, v{L8}, {WS}, {sQT} offen offset:{512*j} sc1' for j in range(3)]
    g(m32(SM, G1T, QS))
    g(f'v_xor_b32 v{T3}, 0x3000, v{SW}\ns_cmp_eq_u32 {sC}, 0\ns_nop 5\nds_write_b128 v{SW}, {reg4("v", SM)} offset:2048')
    def kvsum(accs, srcs):
        for a_, s_ in zip(accs, srcs):
            for t in addp(a_, s_): g(t)
        for j, a_ in enumerate(accs): g(cvt(VA+2*j, a_)); g(cvt(VA+2*j+1, a_+2))
    def kvstore():
        if p.x_nokm: return
        g(f'buffer_store_dwordx4 {reg4("v", VA)}, v{L16}, {WS}, {sKM} offen sc1\nbuffer_store_dwordx2 {reg2("v", VA+4)}, v{L8}, {WS}, {sKM} offen offset:1024 sc1')
    LNK, LNK2 = g.label('nk'), g.label('nk')
    KA = [QK+12, QK+16, QK+20]
    g(f's_cbranch_scc0 {LNK}')
    for a_, s_ in zip(KA, [G1T, G1T+2, G2T+2]):
        for t in addp(a_, s_): g(t)
    g.put(LNK)
    g('s_waitcnt lgkmcnt(0)\ns_barrier')
    SR = [[KX, KX+4, KX+8], [KX+12, KX+16, KX+20], [X2a, X2b, G1]]
    for j in range(3):
        for k in range(3): g(f'ds_read_b128 {reg4("v", SR[j][k])}, v{(T1, T2, T3)[k]} offset:{1024*j}')
    g(f's_cbranch_scc0 {LNK2}')
    for j, a_ in enumerate(KA): g(cvt(VA+2*j, a_)); g(cvt(VA+2*j+1, a_+2))
    g.put(LNK2)
    S = [X1a + r for r in range(8)] + [SM + r for r in range(4)]
    T = ST
    g(f'v_mov_b32 v{T+3}, {sNI}\nv_mov_b32 v{T+2}, {sCE}')
    g(f'ds_read_b128 {reg4("v", VX+12)}, v{OW1}\nds_read_b128 {reg4("v", VX+16)}, v{OW1} offset:4096\nds_read_b128 {reg4("v", VX+20)}, v{SW} offset:3072')
    for j in range(3):
        g(f's_waitcnt lgkmcnt({9-3*j})')
        a_, b_, c_ = SR[j]; o_ = S[4*j]
        for h in range(2): g(f'v_pk_add_f32 {reg2("v", a_+2*h)}, {reg2("v", a_+2*h)}, {reg2("v", b_+2*h)}\nv_pk_add_f32 {reg2("v", o_+2*h)}, {reg2("v", o_+2*h)}, {reg2("v", c_+2*h)}')
        for h in range(2): g(f'v_pk_add_f32 {reg2("v", o_+2*h)}, {reg2("v", o_+2*h)}, {reg2("v", a_+2*h)}')
        if j == 1: g(f'v_max3_f32 v{T}, v{S[0]}, v{S[1]}, v{S[2]}\nv_max3_f32 v{T+1}, v{S[3]}, v{S[4]}, v{S[5]}\nv_max3_f32 v{T}, v{T}, v{S[6]}, v{S[7]}')
    stamp(4); mark('s4')
    for r in range(4): g(f'v_cndmask_b32 v{S[8+r]}, v{T+3}, v{S[8+r]}, s[50:51]')
    g(f'v_max3_f32 v{T+1}, v{T+1}, v{S[8]}, v{S[9]}\nv_max3_f32 v{T}, v{T}, v{S[10]}, v{S[11]}\nv_max_f32 v{T}, v{T}, v{T+1}')
    def bfly(op, a_, b_, nops=('s_nop 1', 's_nop 1')):
        o = []
        for sw, np_ in zip(('v_permlane16_swap_b32', 'v_permlane32_swap_b32'), nops):
            o += [f'v_mov_b32 v{b_}, v{a_}', np_, f'{sw} v{a_}, v{b_}', f'{op} v{a_}, v{a_}, v{b_}']
        return o
    for t in bfly('v_max_f32', T, T+1, (lv[0] + '\n' + lv[1], lv[2] + '\ns_nop 0')): g(t)
    g(f'v_mul_f32 v{T}, {sCE}, v{T}')
    for h in range(6):
        g(f'v_pk_fma_f32 {reg2("v", S[2*h])}, {reg2("v", S[2*h])}, {reg2("v", T+2)}, {reg2("v", T)} op_sel_hi:[1,0,0] neg_lo:[0,0,1] neg_hi:[0,0,1]')
    mark('fma')
    PX, P1, P2, PM = QK, QK + 12, QK + 16, QK + 20
    for r in range(9): g(f'v_exp_f32 v{S[r]}, v{S[r]}')
    for h in range(4): g(cvt(PX+h, S[2*h]))
    for h in range(4): g(f'v_cndmask_b32 v{P1+h}, 0, v{PX+h}, s[48:49]')
    mark('pv0')
    OA = [Q[0], Q[7], Q[5]]
    g(f'v_cndmask_b32 v{P2}, v{PX}, 0, s[48:49]\nv_cndmask_b32 v{P2+1}, v{PX+1}, 0, s[48:49]')
    pv = [m32(OA[j], VX+12*c+4*j, (P1, P2)[c], c == 0) for c in range(2) for j in range(3)]
    pv[3] = 's_waitcnt lgkmcnt(0)\n' + pv[3]
    weave(g, pv, [f'v_cndmask_b32 v{P2+2}, v{PX+2}, 0, s[48:49]', f'v_cndmask_b32 v{P2+3}, v{PX+3}, 0, s[48:49]',
                  f'v_exp_f32 v{S[9]}, v{S[9]}', f'v_exp_f32 v{S[10]}, v{S[10]}', f'v_exp_f32 v{S[11]}, v{S[11]}', cvt(PM, S[8]), cvt(PM+2, S[8]), cvt(PM+1, S[10]), cvt(PM+3, S[10]),
                  's_waitcnt vmcnt(0)'], per=2)
    Lb = g.label('b'); g.put(Lb)
    for t in tagops([VOP[j]+2 for j in range(3)], sTG): g(t)
    retry(lv, Lb)
    mark('pv1')
    U = T + 2
    sums = [f'v_pk_add_f32 {reg2("v", T)}, {reg2("v", S[0])}, {reg2("v", S[2])}', f'v_pk_add_f32 {reg2("v", U)}, {reg2("v", S[4])}, {reg2("v", S[6])}',
            f'v_pk_add_f32 {reg2("v", T)}, {reg2("v", T)}, {reg2("v", S[8])}', f'v_pk_add_f32 {reg2("v", U)}, {reg2("v", U)}, {reg2("v", S[10])}',
            f'v_pk_add_f32 {reg2("v", T)}, {reg2("v", T)}, {reg2("v", U)}', f'v_add_f32 v{T}, v{T}, v{T+1}']
    weave(g, [m32(OA[j], VOP[j], PM) for j in range(3)], sums + [f's_cmp_eq_u32 {sST}, {NS-1}', f's_cbranch_scc1 {LEND}', f's_cmp_eq_u32 {sC}, 1'], per=1)
    OP = X2a
    mark('pv2')
    if p.trace is not None: g(f's_cmp_eq_u32 {sC}, 1')
    for j in range(3):
        g(cvt(OP+2*j, OA[j])); g(cvt(OP+2*j+1, OA[j]+2))
        if j == 1: g(f'ds_write_b128 v{OW1}, {reg4("v", OP)} offset:{LOB}')
    g(f'ds_write_b64 v{OW2}, {reg2("v", OP+4)}')
    LNV1 = g.label('nv')
    g(f's_cbranch_scc0 {LNV1}')
    for j in range(3):
        for t in addp(VA+4*j, VOP[j]+2): g(t)
    g.put(LNV1)
    g('s_waitcnt lgkmcnt(0)\ns_barrier')
    stamp(5); mark('s5')
    if p.trace is not None: g(f's_cmp_eq_u32 {sC}, 1')
    OF = KX
    for k in range(6): g(f'ds_read_b128 {reg4("v", OF+4*k)}, v{LM} offset:{LOB + 1024*k}')
    LNV = g.label('nv')
    g(f's_cbranch_scc0 {LNV}')
    for j in range(3): g(cvt(VA+2*j, VA+4*j)); g(cvt(VA+2*j+1, VA+4*j+2))
    g.put(LNV)
    kvstore()
    mark('wo0')
    WA = QK
    def wo(t, ks):
        k, b = wo_reg(t, ks)
        return f'v_mfma_f32_16x16x32_bf16 {reg4("v", WA+4*t)}, {reg4(k, b)}, {reg4("v", OF+4*ks)}, ' + (reg4("v", WA+4*t) if ks else '0')
    def scale(t): return [f'v_pk_mul_f32 {reg2("v", WA+4*t+2*h)}, {reg2("v", WA+4*t+2*h)}, {reg2("v", T)} op_sel_hi:[1,0]' for h in range(2)]
    def packw(t, dst, off):
        A_ = WA + 4*t
        return scale(t) + scale(t+1) + [cvt(dst, A_), cvt(dst+1, A_+2), cvt(dst+2, A_+4), cvt(dst+3, A_+6), tag(dst, sTG),
                f'buffer_store_dwordx4 {reg4("v", dst)}, v{L16}, {WS}, {sPP} offen offset:{off} {g.loc}']
    nrm = [x for x in bfly('v_add_f32', T, T+1, ('s_nop 0', 's_nop 0'))] + [f'v_rcp_f32 v{T}, v{T}']
    sal = [f's_lshr_b32 {sMT}, {sST}, 1', f's_and_b32 {sMT}, {sMT}, 1', f's_xor_b32 {sMT}, {sMT}, 1', f's_and_b32 {sMS}, {sST}, 1', f's_mul_i32 {sMS}, {sMS}, 20480',
           f's_add_u32 {sT0}, {sRR}, {sMS}', f's_add_u32 {sT1}, {sRL}, {sMS}']
    f0 = nrm + sal[:3]
    for ks in range(6):
        g(f's_waitcnt lgkmcnt({5-ks})'); g(wo(0, ks)); g(f0.pop(0)); g(wo(1, ks)); g(f0.pop(0))
    def merge(dst, acc, st):
        return [cvt(dst+2, acc), cvt(dst+3, acc+2), cvt(dst, acc), cvt(dst+1, acc+2), 's_nop 0',
                f'v_permlane16_swap_b32 v{dst}, v{dst+2}', f'v_permlane16_swap_b32 v{dst+1}, v{dst+3}', tag(dst, st)]
    half = scale(4) + merge(Q[7], WA+16, sTG) + [f'buffer_store_dwordx4 {reg4("v", Q[7])}, v{RS}, {WS}, {sPH} offen {g.loc}']
    pw0 = packw(0, Q[0], 0)
    mark('wo1')
    weave(g, [wo(t, ks) for ks in range(6) for t in (2, 3)], sal[3:] + pw0[:8], per=1)
    weave(g, [wo(4, ks) for ks in range(6)], pw0[8:] + [f's_cmp_ge_u32 {sQ}, 80'], per=1)
    mark('wo2')
    for t in packw(2, Q[5], 1024) + half: g(t)
    stamp(6); mark('s6')
    LNR = g.label('nr')
    if p.trace is not None: g(f's_cmp_ge_u32 {sQ}, 80')
    g(f's_cbranch_scc1 {LNR}')
    if p.d_red: g(f's_sleep {p.d_red}')
    LR = M + 4
    lr = [f'buffer_load_dwordx4 {reg4("v", LR+4*i)}, v{RD}, {WS}, s{sRD+i} offen sc1' for i in range(4)]
    for t in lr: g(t)
    g('s_waitcnt vmcnt(0)')
    Lb = g.label('b'); g.put(Lb)
    weave(g, [f'v_mfma_f32_16x16x32_bf16 {reg4("v", VA)}, {reg4("v", ONE)}, {reg4("v", LR+4*i)}, ' + (reg4("v", VA) if i else '0') for i in range(4)],
          tagops([LR + 4*i for i in range(4)], sTG), per=1)
    retry(lr, Lb)
    stamp(7); mark('s7')
    g('s_nop 4')
    for t in merge(ST, VA, sMT): g(t.replace('s_nop 0', 's_mov_b32 exec_hi, 0'))
    g(f'buffer_store_dwordx4 {reg4("v", ST)}, v{RS}, {WS}, {sT0} offen sc1\nbuffer_store_dwordx4 {reg4("v", ST)}, v{RS}, {WS}, {sT1} offen {g.loc}')
    g('s_mov_b32 exec_hi, -1')
    def tail(sl):
        Lw, Lo = g.label('kw'), g.label('ko')
        g(f'v_mov_b32 v{VT}, 1\nv_cmp_eq_u32 vcc, 0, v{FD}\nbuffer_store_dword v{VT}, off, {WS}, {sFK} sc1\ns_cbranch_vccnz {Lw}')
        g.put(Lo); KW.append((Lw, Lo))
        for t in kx_loads(): g(t)
        g(f's_mov_b32 {sST}, {sN1}\ns_xor_b32 {sTG}, {sTG}, 1\ns_add_u32 {sKM}, {sKM}, {32*HU}\ns_add_u32 {sFK}, {sFK}, 1024')
        if sl: g(f's_sleep {sl}')
        g(f's_branch {LSTEP}')
    tail(p.d_m)
    g.put(LNR)
    if p.series:
        g(f's_memrealtime s[46:47]\ns_and_b32 m0, {sST}, 63\ns_waitcnt lgkmcnt(0)\nv_writelane_b32 v{RD}, s46, m0')
    g('s_waitcnt vmcnt(0)')
    tail(p.d_nr)
    g.put(LP1 + 'x')
    g('s_waitcnt lgkmcnt(0)\ns_barrier')
    mem0_to_lds(True)
    g(f's_branch {LP1}')
    for Lw, Lo in KW:
        g.put(Lw)
        g.flagwait(FLD, [f'v{FD}'], FAIL, sleep=1)
        g(f's_branch {Lo}')
    for ri, (L, loads, back) in enumerate(RETRY):
        g.put(L)
        g('s_nop 7')
        if p.trace is not None: g('s_add_u32 {0}, {0}, 1'.format(('s0', 's1', 's1', 's2', 's44')[ri]))
        for t in loads: g(t)
        g.spin(FAIL)
        g(f's_waitcnt vmcnt(0)\ns_branch {back}')
    g.put(LEND)
    LNV = g.label('nv')
    g(f's_cmp_eq_u32 {sC}, 1\ns_cbranch_scc0 {LNV}')
    kvsum([VA, VA+4, VA+8], [VOP[j]+2 for j in range(3)])
    g.put(LNV)
    kvstore()
    g(f's_waitcnt vmcnt(0)\nv_mov_b32 v{VT}, 1\nbuffer_store_dword v{VT}, off, {WS}, {sFK} sc1')
    if p.trace is not None:
        if p.series:
            g(f's_lshl_b32 s46, {sCU}, 2\ns_add_u32 s46, s46, {sW}\ns_lshl_b32 s46, s46, 8\ns_add_u32 s46, s46, {STAMP+0x10000}\nv_lshlrev_b32 v{VT}, 2, v0\nbuffer_store_dword v{RD}, v{VT}, {WS}, s46 offen')
        g('s_mov_b64 exec, 1')
        g(f's_memrealtime s[46:47]\ns_waitcnt lgkmcnt(0)\ns_mov_b32 s99, s46')
        g(f's_lshl_b32 s46, {sCU}, 2\ns_add_u32 s46, s46, {sW}\ns_lshl_b32 s46, s46, 6\ns_add_u32 s46, s46, {STAMP}')
        for k in range(12): g(f'v_mov_b32 v{VT}, s{90+k}\nbuffer_store_dword v{VT}, v0, {WS}, s46 offen offset:{4*k}')
        g(f's_memtime s[48:49]\ns_waitcnt lgkmcnt(0)\ns_sub_u32 s48, s48, s59\nv_mov_b32 v{VT}, s48\nbuffer_store_dword v{VT}, v0, {WS}, s46 offen offset:48\nv_mov_b32 v{VT}, {sSPIN}\nbuffer_store_dword v{VT}, v0, {WS}, s46 offen offset:52')
        g(f's_lshl_b32 s1, s1, 16\ns_or_b32 s0, s0, s1\ns_lshl_b32 s44, s44, 16\ns_or_b32 s2, s2, s44\nv_mov_b32 v{VT}, s0\nbuffer_store_dword v{VT}, v0, {WS}, s46 offen offset:56\nv_mov_b32 v{VT}, s2\nbuffer_store_dword v{VT}, v0, {WS}, s46 offen offset:60')
    g('s_endpgm')
    fail_exit(g, FAIL, 1)


def xn_dma_setup(g, vD, vA):
    g(f'v_lshrrev_b32 v40, 3, v0\ns_lshl_b32 s46, {sW}, 3\nv_add_u32 v40, s46, v40')
    g(f'v_bfe_u32 v41, v40, 1, 3\nv_and_b32 v42, 7, v0\nv_xor_b32 v41, v41, v42\nv_lshlrev_b32 v41, 4, v41')
    g(f'v_mul_u32_u24 v40, 1280, v40\nv_add_u32 v{vD}, v40, v41')
    g(f'v_bfe_u32 v40, v0, 3, 1\nv_mul_u32_u24 v40, 10240, v40\nv_and_b32 v41, 7, v0\nv_lshlrev_b32 v41, 7, v41\nv_add_u32 v40, v40, v41')
    g(f'v_bfe_u32 v41, v0, 1, 3\nv_lshrrev_b32 v42, 4, v0\nv_xor_b32 v41, v41, v42\nv_lshlrev_b32 v41, 4, v41\nv_add_u32 v{vA}, v40, v41\nv_xor_b32 v{vA+1}, 64, v{vA}')
def xn_dma(g, vD, soff, sm0):
    g(f's_mov_b32 m0, {sm0}')
    for kp in range(10):
        if kp: g('s_add_u32 m0, m0, 896')
        g(f's_nop 0\nbuffer_load_dwordx4 v{vD}, {WS}, {soff} offen offset:{128*kp} sc1 lds')
def xn_frag(dst, vA, tau, ks, base=0):
    return f'ds_read_b128 {reg4("v", dst)}, v{vA + (ks & 1)} offset:{base + (20*tau + (ks >> 1))*1024}'

DPP4 = ('quad_perm:[1,0,3,2]', 'quad_perm:[2,3,0,1]', 'row_half_mirror', 'row_mirror')
def allreduce(g, r, t, full):
    for d in DPP4: g(f's_nop 1\nv_add_f32_dpp v{r}, v{r}, v{r} {d} row_mask:0xf bank_mask:0xf')
    for sw in ('v_permlane16_swap_b32',) + (('v_permlane32_swap_b32',) if full else ()):
        g(f'v_mov_b32 v{t}, v{r}\ns_nop 1\n{sw} v{r}, v{t}\nv_add_f32 v{r}, v{r}, v{t}')
def bf16r(g, r):
    g(f'v_cvt_pk_bf16_f32 v{r}, v{r}, v{r}\nv_and_b32 v{r}, 0xffff0000, v{r}')
def unpack(g, dst, src, n):
    for j in range(n): g(f'v_lshlrev_b32 v{dst+2*j}, 16, v{src+j}\nv_and_b32 v{dst+2*j+1}, 0xffff0000, v{src+j}')
def ln_finish(g, X, n, mean, var, out, tmp):
    bf16r(g, mean); bf16r(g, var)
    g(f'v_add_f32 v{var}, 0x3727c5ac, v{var}'); bf16r(g, var)
    g(f'v_sqrt_f32 v{var}, v{var}\ns_nop 0'); bf16r(g, var)
    g(f'v_rcp_f32 v{var}, v{var}')
    for j in range(n): g(f'v_sub_f32 v{X+j}, v{X+j}, v{mean}')
    for j in range(n // 2): g(f'v_cvt_pk_bf16_f32 v{tmp+j}, v{X+2*j}, v{X+2*j+1}')
    unpack(g, X, tmp, n // 2)
    for j in range(n): g(f'v_mul_f32 v{X+j}, v{X+j}, v{var}')
    for j in range(n // 2): g(f'v_cvt_pk_bf16_f32 v{out+j}, v{X+2*j}, v{X+2*j+1}')

def reduce_ln(g, nset, loads, LD, SEL2, stag, RES, vST, vSR, FAIL, do_ln_label, R, after_issue=None, younger=0):
    VT = R + 30; ACC = R; X = R + 8; XP = R + 16; NP = R + 20; TM = R + 24
    per = 16 // nset
    for t in loads: g(t)
    if after_issue: after_issue()
    Lb, Lr, Lok = g.label('b'), g.label('r'), g.label('ok')
    g(f's_waitcnt vmcnt({younger})')
    g.put(Lb)
    tg = [f'v_bitop3_b32 v{VT}, v{LD}, v{LD+4}, {stag} bitop3:0x7e'] + [f'v_bitop3_b32 v{VT}, v{VT}, v{LD+4*i}, {stag} bitop3:0xf6' for i in range(2, 16)]
    tg += [f'v_and_b32 v{VT}, 1, v{VT}', f'v_cmp_ne_u32 vcc, 0, v{VT}', 's_and_b64 vcc, vcc, s[56:57]']
    mf = [f'v_mfma_f32_16x16x32_bf16 {reg4("v", ACC + 4*(i // per))}, {reg4("v", SEL2)}, {reg4("v", LD+4*i)}, ' + (reg4("v", ACC + 4*(i // per)) if i % per else '0') for i in range(16)]
    weave(g, mf, tg, per=1)
    g(f's_cbranch_vccz {Lok}\ns_nop 7')
    for t in loads: g(t)
    g.spin(FAIL)
    g(f's_waitcnt vmcnt(0)\ns_branch {Lb}')
    g.put(Lok)
    n = 4 * nset
    g('s_nop 4')
    for j in range(n // 2): g(f'v_cvt_pk_bf16_f32 v{TM+j}, v{ACC+2*j}, v{ACC+2*j+1}')
    unpack(g, ACC, TM, n // 2); unpack(g, X, RES, n // 2)
    for j in range(n): g(f'v_add_f32 v{X+j}, v{X+j}, v{ACC+j}')
    for j in range(n // 2): g(f'v_cvt_pk_bf16_f32 v{XP+j}, v{X+2*j}, v{X+2*j+1}')
    if do_ln_label: g(f's_cbranch_scc1 {do_ln_label}')
    unpack(g, X, XP, n // 2)
    m, q = R + 28, R + 29
    g(f'v_add_f32 v{m}, v{X}, v{X+1}')
    for j in range(2, n): g(f'v_add_f32 v{m}, v{m}, v{X+j}')
    allreduce(g, m, VT, nset == 1)
    g(f'v_mul_f32 v{m}, 0x3bcccccd, v{m}')
    for j in range(n): g(f'v_sub_f32 v{ACC+j}, v{X+j}, v{m}')
    g(f'v_mul_f32 v{q}, v{ACC}, v{ACC}')
    for j in range(1, n): g(f'v_fmac_f32 v{q}, v{ACC+j}, v{ACC+j}')
    g(f'v_cndmask_b32 v{q}, 0, v{q}, s[56:57]')
    allreduce(g, q, VT, nset == 1)
    g(f'ds_write_b64 v{vST}, {reg2("v", m)}\ns_waitcnt lgkmcnt(0)\ns_barrier')
    g(f'ds_read_b128 {reg4("v", ACC)}, v{vSR}\nds_read_b128 {reg4("v", ACC+4)}, v{vSR} offset:16\ns_waitcnt lgkmcnt(0)')
    g(f'v_add_f32 v{m}, v{ACC}, v{ACC+2}\nv_add_f32 v{q}, v{ACC+4}, v{ACC+6}\nv_add_f32 v{m}, v{m}, v{q}\nv_mul_f32 v{m}, 0.25, v{m}'.replace('0.25', '0x3e800000'))
    g(f'v_add_f32 v{q}, v{ACC+1}, v{ACC+3}\nv_add_f32 v{ACC+1}, v{ACC+5}, v{ACC+7}\nv_add_f32 v{q}, v{q}, v{ACC+1}')
    for j in range(4): g(f'v_sub_f32 v{ACC+2*j}, v{ACC+2*j}, v{m}')
    g(f'v_mul_f32 v{ACC+1}, v{ACC}, v{ACC}')
    for j in range(1, 4): g(f'v_fmac_f32 v{ACC+1}, v{ACC+2*j}, v{ACC+2*j}')
    g(f'v_fmac_f32 v{q}, 0x43200000, v{ACC+1}\nv_mul_f32 v{q}, 0x3acccccd, v{q}')
    ln_finish(g, X, n, m, q, NP, TM)

def wo_pieces(dB, tB, srd, row0, kts, dst, adj=None):
    pcs = []
    for ks, ta in enumerate(kts):
        def reads(slot, ks=ks):
            out = []
            for t in range(10):
                k, b = dst(t, ks); off = 64*(t >> 1) + 8*(t & 1)
                out += [tr(reg2(k, b), tB, slot + off), tr(reg2(k, b+2), tB, slot + off + 16*1280)]
            return out
        use_adj = adj if (adj and ks == len(kts) - 1) else None
        pcs.append(dict(size=40960, wl='s56', srd=srd, dma=[(f'v{dB + j % 5}', (ta*16 + 4*(j // 5))*1280, use_adj, 1024*j) for j in range(10)], reads=reads))
    return pcs
def red_masks(g):
    g('s_mov_b32 s56, 0x03ff03ff\ns_mov_b32 s57, 0x03ff03ff')

def out_gemm(g, nks, wreg, F, ACC, PK, vP, sOff, stag, pre=()):
    pend = list(pre)
    for b in range(5):
        A_ = ACC + 16*(b & 1)
        mf = []
        for ks in range(nks):
            for u in range(2):
                for tau in range(2):
                    k, r = wreg(2*b + u, ks); d = A_ + 8*tau + 4*u
                    mf.append(f'v_mfma_f32_16x16x32_bf16 {reg4("v", d)}, {reg4(k, r)}, {reg4("v", F + 4*(nks*tau + ks))}, ' + (reg4("v", d) if ks else '0'))
        weave(g, mf, pend, start=4 if b else 0, per=1 if nks > 3 else 2)
        pend = []
        for tau in range(2):
            d = A_ + 8*tau; o = PK + 4*tau
            pend += [f'v_cvt_pk_bf16_f32 v{o+j}, v{d+2*j}, v{d+2*j+1}' for j in range(4)] + [f'v_bfi_b32 v{o}, 1, {stag}, v{o}',
                     f'buffer_store_dwordx4 {reg4("v", o)}, v{vP+tau}, {WS}, {sOff} offen offset:{64*b} {g.loc}']
    g('s_nop 7')
    for t in pend: g(t)

def role_qkv(g):
    p = g.p; DA = p.D + p.A
    FAIL = g.label('failq')
    sWh = 's52'
    g(f's_sub_u32 {sWh}, {sX}, 5')
    g(f's_cmp_eq_u32 {sWh}, 1\ns_cselect_b32 s60, s22, s20\ns_cselect_b32 s61, s23, s21\ns_cmp_eq_u32 {sWh}, 2\ns_cselect_b32 s60, s24, s60\ns_cselect_b32 s61, s25, s61')
    g('s_and_b32 s61, s61, 0xffff\ns_mov_b32 s62, 7864320\ns_mov_b32 s63, 0x20000')
    dA, tA = 16, 26
    dma_offsets(g, dA, 3, 384, 12288, 8, 40)
    g(f's_mul_i32 s46, {sR}, 384')
    for j in range(3): g(f'v_add_u32 v{dA+j}, s46, v{dA+j}')
    tr_bases(g, tA, 8, 384, 8, 40); g(f's_mul_i32 s46, {sW}, 96'); tr_finish(g, tA, 's46')
    g(f's_mul_i32 s55, {sW}, 3072')
    pcs = []
    for ks in range(20):
        def reads(slot, ks=ks):
            out = []
            for t in range(3):
                b = (t*20 + ks)*4
                out += [tr(reg2('a', b), tA, slot + 32*t), tr(reg2('a', b+2), tA, slot + 32*t + 4*384)]
            return out
        pcs.append(dict(size=12288, wl='s55', srd='s[60:63]', dma=[(f'v{dA+j}', ks*32*12288, None, 1024*j) for j in range(3)], reads=reads))
    weight_pipe(g, pcs, 0, 163840, after_first_barrier=lambda: arrive(g))
    L16, L4, vD, vA, vB, VT = 1, 2, 3, 4, 6, 8
    FR, ACC, PK = 16, 48, 72
    g(f'v_lshlrev_b32 v{L16}, 4, v0\nv_lshlrev_b32 v{L4}, 2, v0')
    xn_dma_setup(g, vD, vA)
    sN1, sN2, sCur, sNx, sBuf, sPf, sOB, sFB, sWL, sT = 's64', 's65', 's66', 's67', 's68', 's69', 's70', 's71', 's72', 's73'
    g(f's_mul_i32 {sOB}, {sWh}, {QKVF_WHICH}\ns_mul_i32 s46, {sR}, {HU}\ns_add_u32 {sOB}, {sOB}, s46\ns_mul_i32 s46, {sW}, 3072\ns_add_u32 {sOB}, {sOB}, s46\ns_add_u32 {sOB}, {sOB}, {QKVF}')
    g(f's_lshl_b32 {sFB}, {sR}, 6\ns_lshl_b32 s46, {sWh}, 4\ns_add_u32 {sFB}, {sFB}, s46\ns_lshl_b32 s46, {sW}, 2\ns_add_u32 {sFB}, {sFB}, s46\ns_add_u32 {sFB}, {sFB}, {F_QKV}')
    g(f's_mul_i32 {sWL}, {sW}, 10240')
    gridsync(g, FAIL)
    def fetch(unit, buf):
        g(f's_lshl_b32 {sT}, {unit}, 8\ns_add_u32 {sT}, {sT}, {F_XN}')
        g.flagwait(f'buffer_load_dword v{VT}, v{L4}, {WS}, {sT} offen sc1', [f'v{VT}'], FAIL, sleep=1)
        g(f's_mul_i32 {sT}, {unit}, {UNIT}\ns_add_u32 {sT}, {sT}, {XN}\ns_add_u32 s46, {buf}, {sWL}')
        xn_dma(g, vD, sT, 's46')
    g(f's_mov_b32 {sN1}, 1\ns_mov_b32 {sN2}, 0\ns_mov_b32 {sCur}, 0\ns_mov_b32 {sBuf}, 0')
    fetch(sCur, sBuf)
    LV = g.label('isv')
    g(f's_cmp_eq_u32 {sWh}, 2\ns_cbranch_scc1 {LV}')
    for isv in (0, 1):
        if isv: g.put(LV)
        LT, L2, LC, LE, LS = g.label('top'), g.label('n2'), g.label('cmp'), g.label('end'), g.label('skip')
        g.put(LT)
        g('s_waitcnt vmcnt(0)\ns_barrier')
        g(f's_add_u32 s46, {sN2}, {DA}\ns_min_u32 s46, s46, 64\ns_cmp_lt_u32 {sN1}, s46\ns_cbranch_scc0 {L2}')
        g(f's_mov_b32 {sNx}, {sN1}\ns_add_u32 {sN1}, {sN1}, 1\ns_mov_b32 {sPf}, 1\ns_sub_u32 s47, {UNIT}, {sBuf}')
        g('s_mov_b32 s74, s47'); fetch(sNx, 's74')
        g(f's_branch {LC}')
        g.put(L2)
        g(f's_add_u32 {sNx}, {sN2}, 64\ns_add_u32 {sN2}, {sN2}, 1\ns_mov_b32 {sPf}, 0')
        g.put(LC)
        g(f'v_add_u32 v{vB}, {sBuf}, v{vA}\nv_add_u32 v{vB+1}, {sBuf}, v{vA+1}')
        def rd(n): return xn_frag(FR + 4*(n % 8), vB, n & 1, n >> 1)
        for n in range(6): g(rd(n))
        for ks in range(20):
            g(f's_waitcnt lgkmcnt({min(4, 38 - 2*ks)})')
            for i in range(6):
                tau, t = divmod(i, 3)
                d = reg4('v', ACC + 4*(3*tau + t)); w_ = reg4('a', (t*20 + ks)*4); x_ = reg4('v', FR + 4*((2*ks + tau) % 8))
                g.mfma(d, x_ if isv else w_, w_ if isv else x_, None if ks else 0)
                if i in (0, 3) and 2*ks + 6 + (i == 3) < 40: g(rd(2*ks + 6 + (i == 3)))
        g(f's_mul_i32 {sT}, {sCur}, {32*HU}\ns_add_u32 {sT}, {sT}, {sOB}\ns_lshl_b32 s46, {sCur}, 11\ns_add_u32 s46, s46, {sFB}\nv_mov_b32 v{VT}, 1\ns_nop 2')
        grp = [(0, 3), (1, 4), (2, 5)] if isv else [(0, 1), (3, 4), (2, 5)]
        for j, (x, y) in enumerate(grp):
            o = PK + 4*j
            g(f'v_cvt_pk_bf16_f32 v{o}, v{ACC+4*x}, v{ACC+4*x+1}\nv_cvt_pk_bf16_f32 v{o+1}, v{ACC+4*x+2}, v{ACC+4*x+3}')
            g(f'v_cvt_pk_bf16_f32 v{o+2}, v{ACC+4*y}, v{ACC+4*y+1}\nv_cvt_pk_bf16_f32 v{o+3}, v{ACC+4*y+2}, v{ACC+4*y+3}')
            g(f'buffer_store_dwordx4 {reg4("v", o)}, v{L16}, {WS}, {sT} offen offset:{1024*j} sc1')
        g(f's_waitcnt vmcnt(0)\nbuffer_store_dword v{VT}, off, {WS}, s46 sc1')
        g(f's_sub_u32 {sBuf}, {UNIT}, {sBuf}\ns_mov_b32 {sCur}, {sNx}\ns_cmp_ge_u32 {sCur}, 128\ns_cbranch_scc1 {LE}')
        g(f's_cmp_eq_u32 {sPf}, 1\ns_cbranch_scc1 {LT}')
        fetch(sCur, sBuf)
        g(f's_branch {LT}')
        g.put(LE)
        g('s_endpgm')
    fail_exit(g, FAIL, 8)

def role_att(g):
    p = g.p; D = p.D
    FAIL = g.label('faila')
    sL = 's52'
    g(f's_sub_u32 {sL}, {sX}, 2')
    if not g.safe:
        g('s_waitcnt vmcnt(0)\ns_barrier'); arrive(g)
    g(f's_lshl_b32 s53, {sR}, 1\ns_add_u32 s53, s53, {sL}\ns_mul_i32 s54, s53, {UNIT}\ns_mul_i32 s46, {sW}, 10240\ns_add_u32 s54, s54, s46\nv_mul_u32_u24 v1, 20, v0')
    for i in range(8):
        g(f's_add_u32 s46, s54, {1280*i}\nbuffer_load_dwordx4 {reg4("v", 8+6*i)}, v1, {INP}, s46 offen\nbuffer_load_dword v{12+6*i}, v1, {INP}, s46 offen offset:16')
    for i in range(8):
        X, m, q, t_, o = 60, 70, 71, 72, 80
        g('s_waitcnt vmcnt(14)')
        unpack(g, X, 8 + 6*i, 5)
        g(f'v_add_f32 v{m}, v{X}, v{X+1}')
        for j in range(2, 10): g(f'v_add_f32 v{m}, v{m}, v{X+j}')
        allreduce(g, m, t_, True)
        g(f'v_mul_f32 v{m}, 0x3acccccd, v{m}')
        for j in range(10): g(f'v_sub_f32 v{o+j}, v{X+j}, v{m}')
        g(f'v_mul_f32 v{q}, v{o}, v{o}')
        for j in range(1, 10): g(f'v_fmac_f32 v{q}, v{o+j}, v{o+j}')
        allreduce(g, q, t_, True)
        g(f'v_mul_f32 v{q}, 0x3acccccd, v{q}')
        ln_finish(g, X, 10, m, q, 92, 74)
        g(f's_add_u32 s46, s54, {XN + 1280*i}\nbuffer_store_dwordx4 {reg4("v", 92)}, v1, {WS}, s46 offen sc1\nbuffer_store_dword v96, v1, {WS}, s46 offen offset:16 sc1')
    gridsync(g, FAIL)
    g(f's_waitcnt vmcnt(0)\ns_lshl_b32 s46, s53, 8\ns_lshl_b32 s47, {sW}, 6\ns_add_u32 s46, s46, s47\ns_add_u32 s46, s46, {F_XN}')
    g(f'v_lshlrev_b32 v1, 2, v0\nv_mov_b32 v2, 1\ns_mov_b64 exec, 0xffff\nbuffer_store_dword v2, v1, {WS}, s46 offen sc1\ns_mov_b64 exec, -1')
    dB, tB = 20, 29
    dma_offsets(g, dB, 5, 1280, 1280, 8, 40)
    g(f's_mul_i32 s46, {sR}, {192*1280}')
    for j in range(5): g(f'v_add_u32 v{dB+j}, s46, v{dB+j}')
    tr_bases(g, tB, 4, 1280, 16, 40); g(f's_mul_i32 s46, {sW}, 320'); tr_finish(g, tB, 's46')
    g(f's_mul_i32 s56, {sW}, 10240')
    g.srd('wo', 7864320, 60)
    wreg = lambda t, ks: ('a', (t*6 + ks)*4)
    weight_pipe(g, wo_pieces(dB, tB, 's[60:63]', 0, [0, 2, 4, 6, 8, 10], wreg), 0, 163840)
    QB, KB_, VB, KMB, OB, STB = 0, 12288, 24576, 73728, 86016, 98304
    L16, L4, vQ, vQs, vV, vKM, vVM, vVM2, vOW, vOR, vP, vRD, vXO, vST, vSR, VT, vC = 1, 2, 3, 4, 5, 6, 7, 8, 9, 10, 12, 14, 15, 16, 17, 18, 19
    vKM2 = 11
    SEL2 = 20
    masks(g); consts_sel(g, 24, SEL2, 30); red_masks(g)
    sTau, sEh = 's53', 's54'
    g(f's_and_b32 {sTau}, {sW}, 1\ns_lshr_b32 {sEh}, {sW}, 1\nv_lshlrev_b32 v{L16}, 4, v0\nv_lshlrev_b32 v{L4}, 2, v0\nv_lshlrev_b32 v30, 3, v0')
    g(f's_lshl_b32 s46, {sTau}, 10\nv_add_u32 v{vQ}, s46, v{L16}\ns_lshl_b32 s46, {sTau}, 3\nv_add_u32 v{vQs}, s46, v{L16}')
    g(f's_mul_i32 s46, {sEh}, 6144\nv_add_u32 v{vV}, s46, v{L16}')
    g(f'v_add_u32 v{vKM}, {KMB}, v{L16}\nv_add_u32 v{vKM2}, {KMB}, v30\ns_mul_i32 s46, {sEh}, 3072\nv_add_u32 v{vVM}, s46, v{vKM}\nv_add_u32 v{vVM2}, s46, v{vKM2}')
    g(f's_mul_i32 s46, {sTau}, 6144\ns_mul_i32 s47, {sEh}, 3072\ns_add_u32 s46, s46, s47\ns_add_u32 s46, s46, {OB}\nv_add_u32 v{vOW}, s46, v{L16}\nv_add_u32 v{vOR}, {OB}, v{L16}')
    g(f'v_and_b32 v31, 15, v0\nv_lshrrev_b32 v32, 4, v0\nv_mul_u32_u24 v33, 1280, v31\nv_lshlrev_b32 v34, 4, v32\nv_add_u32 v33, v33, v34\ns_mul_i32 s46, {sW}, 320\nv_add_u32 v{vP}, s46, v33\nv_add_u32 v{vP+1}, 20480, v{vP}')
    g(f'v_lshrrev_b32 v33, 5, v0\nv_mul_u32_u24 v33, 160, v33\nv_lshlrev_b32 v34, 4, v31\nv_add3_u32 v33, v33, v34, s46\nv_mov_b32 v35, 0x40000000\nv_cndmask_b32 v35, v35, 0, s[56:57]\nv_add_u32 v33, v33, v35')
    g(f'v_and_b32 v34, 1, v32\nv_mul_u32_u24 v35, 40960, v34\nv_add_u32 v{vRD}, v33, v35\nv_lshlrev_b32 v34, 3, v34\nv_add_u32 v{vXO}, v33, v34')
    g(f's_lshl_b32 s46, {sW}, 3\ns_add_u32 s46, s46, {STB}\nv_mov_b32 v{vST}, s46\nv_mov_b32 v{vSR}, {STB}')
    g(f'v_lshlrev_b32 v32, 2, v32\ns_cmp_eq_u32 {sTau}, 1\ns_cselect_b64 s[46:47], -1, 0')
    for r in range(4):
        g(f'v_add_u32 v33, {r}, v32\nv_cmp_le_u32 vcc, v33, v31\ns_or_b64 s[{64+2*r}:{65+2*r}], vcc, s[46:47]\ns_and_b64 s[{72+2*r}:{73+2*r}], vcc, s[46:47]')
    g(f's_cmp_eq_u32 {sL}, 0\ns_cselect_b32 s80, -1, 0\ns_cselect_b32 s81, 0, -1')
    sS, sU, sTG, sQF, sFQ, sKM, sFK, sPW, sPR, sRO, sXO, sF1, sBuf, sT, sCE, sSC = 's82', 's83', 's84', 's85', 's86', 's87', 's88', 's89', 's90', 's91', 's92', 's93', 's94', 's95', 's96', 's97'
    g(f's_lshl_b32 {sU}, {sL}, 6\ns_mul_i32 {sQF}, {sU}, {32*HU}\ns_mul_i32 s46, {sR}, {HU}\ns_add_u32 {sQF}, {sQF}, s46\ns_mul_i32 s47, {sW}, 3072\ns_add_u32 {sQF}, {sQF}, s47\ns_add_u32 {sQF}, {sQF}, {QKVF}')
    g(f's_lshl_b32 {sFQ}, {sU}, 11\ns_lshl_b32 {sT}, {sR}, 6\ns_add_u32 {sFQ}, {sFQ}, {sT}\ns_add_u32 {sFQ}, {sFQ}, {F_QKV}')
    g(f's_mul_i32 {sKM}, {sL}, {D*32*HU}\ns_add_u32 {sKM}, {sKM}, s46\ns_add_u32 {sKM}, {sKM}, s47\ns_add_u32 {sKM}, {sKM}, {KM}')
    g(f's_mul_i32 {sFK}, {sL}, {D*1024}\ns_lshl_b32 {sT}, {sR}, 5\ns_add_u32 {sFK}, {sFK}, {sT}\ns_add_u32 {sFK}, {sFK}, {F_KM}')
    g(f's_mul_i32 {sPR}, {sL}, {64*UNIT}\ns_add_u32 {sPR}, {sPR}, {WOP}\ns_mul_i32 {sT}, {sR}, {UNIT}\ns_add_u32 {sPW}, {sPR}, {sT}\ns_mul_i32 {sT}, {sR}, 1280\ns_add_u32 {sPR}, {sPR}, {sT}')
    g(f's_mul_i32 {sRO}, {sL}, {X2}\ns_add_u32 {sRO}, {sRO}, {sT}\ns_mul_i32 {sXO}, {sU}, {UNIT}\ns_add_u32 {sXO}, {sXO}, {sT}\ns_add_u32 {sXO}, {sXO}, {X1}')
    g(f's_lshl_b32 {sF1}, {sU}, 9\ns_lshl_b32 {sT}, {sR}, 4\ns_add_u32 {sF1}, {sF1}, {sT}\ns_lshl_b32 {sT}, {sW}, 2\ns_add_u32 {sF1}, {sF1}, {sT}\ns_add_u32 {sF1}, {sF1}, {F_X1}')
    g(f's_mov_b32 s58, s47\ns_mov_b32 {sCE}, 0x3fb8aa3b\ns_mov_b32 {sSC}, 0x3d93cd3a\ns_mov_b32 {sS}, 0\ns_mov_b32 {sBuf}, 0')
    g(f's_cmp_eq_u32 {sL}, 0\ns_cselect_b32 s12, s16, s40\ns_cselect_b32 s13, s17, s41\ns_mov_b32 s14, 0x10000000\ns_cselect_b32 s14, 2621440, s14\ns_and_b32 s13, s13, 0xffff\ns_mov_b32 s15, 0x20000')
    FQL = f'buffer_load_dword v{VT}, v{L4}, {WS}, {sFQ} offen sc1'
    def qkv_dma():
        g(f's_add_u32 s46, {sBuf}, s58\ns_mov_b32 s47, {sQF}')
        for wh in range(3):
            g(f's_add_u32 m0, s46, {12288*wh}')
            if wh: g(f's_add_u32 s47, s47, {QKVF_WHICH}')
            else: g('s_nop 0')
            for j in range(3): g(f'buffer_load_dwordx4 v{L16}, {WS}, s47 offen offset:{1024*j} sc1 lds')
    g('s_mov_b64 exec, 0xfff'); g.flagwait(FQL, [f'v{VT}'], FAIL, sleep=4); g('s_mov_b64 exec, -1')
    qkv_dma()
    g('s_waitcnt vmcnt(0)\ns_barrier')
    LT, LE = g.label('top'), g.label('end')
    QP, QS_, KP0, KP1, KS, VF, SX, SMm, T = 32, 48, 56, 72, 88, 104, 128, 136, 140
    S = [SX + i for i in range(12)]
    g('.p2align 6')
    g.put(LT)
    g(f'v_add_u32 v{vC}, {sBuf}, v{vQ}\nv_add_u32 v{T}, {sBuf}, v{vQs}\nv_add_u32 v{T+1}, {sBuf}, v{L16}\nv_add_u32 v{T+2}, {sBuf}, v{vV}')
    for w in range(4):
        g(f'ds_read_b128 {reg4("v", QP+4*w)}, v{vC} offset:{3072*w}\nds_read_b128 {reg4("v", KP0+4*w)}, v{T+1} offset:{KB_+3072*w}\nds_read_b128 {reg4("v", KP1+4*w)}, v{T+1} offset:{KB_+3072*w+1024}')
    for w in range(4):
        g(f's_waitcnt lgkmcnt({9 - w})')
        for k, KP in enumerate((KP0, KP1)): g.mfma(reg4('v', SX+4*k), reg4('v', KP+4*w), reg4('v', QP+4*w), None if w else 0)
        g(f'ds_read_b64 {reg2("v", QS_+2*w)}, v{T} offset:{3072*w+2048}\nds_read_b128 {reg4("v", KS+4*w)}, v{T+1} offset:{KB_+3072*w+2048}')
    for j in range(6): g(f'ds_read_b128 {reg4("v", VF+4*j)}, v{T+2} offset:{VB+1024*j}')
    g('s_waitcnt lgkmcnt(6)')
    for w in range(4):
        for k in range(2): g.mfma(reg4('v', SX+4*k), reg2('v', KS+4*w+2*k), reg2('v', QS_+2*w), None, 16)
    g('s_mov_b64 exec, 0xff'); g.flagwait(f'buffer_load_dword v{VT}, v{L4}, {WS}, {sFK} offen sc1', [f'v{VT}'], FAIL); g('s_mov_b64 exec, -1')
    g(f's_add_u32 m0, s58, {KMB}\ns_nop 0')
    for j in range(3): g(f'buffer_load_dwordx4 v{L16}, {WS}, {sKM} offen offset:{1024*j} sc1 lds')
    def sround(r0, n):
        for j in range(n // 2): g(f'v_cvt_pk_bf16_f32 v{T+j}, v{r0+2*j}, v{r0+2*j+1}')
        unpack(g, r0, T, n // 2)
        for j in range(n): g(f'v_mul_f32 v{r0+j}, {sSC}, v{r0+j}')
        for j in range(n // 2): g(f'v_cvt_pk_bf16_f32 v{T+j}, v{r0+2*j}, v{r0+2*j+1}')
        unpack(g, r0, T, n // 2)
    sround(SX, 8)
    g(f'v_mov_b32 v{T+7}, 0xff800000')
    for r in range(4): g(f'v_cndmask_b32 v{SX+r}, v{T+7}, v{SX+r}, s[{64+2*r}:{65+2*r}]\nv_cndmask_b32 v{SX+4+r}, v{T+7}, v{SX+4+r}, s[{72+2*r}:{73+2*r}]')
    g(f'v_max3_f32 v{T+4}, v{SX}, v{SX+1}, v{SX+2}\nv_max3_f32 v{T+5}, v{SX+3}, v{SX+4}, v{SX+5}\nv_max3_f32 v{T+4}, v{T+4}, v{SX+6}, v{SX+7}')
    g('s_waitcnt vmcnt(0)\ns_barrier')
    MP, MS, VM = KP0, KP1, KS
    for w in range(4): g(f'ds_read_b128 {reg4("v", MP+4*w)}, v{vKM} offset:{1536*w}')
    for w in range(4): g(f'ds_read_b64 {reg2("v", MS+2*w)}, v{vKM2} offset:{1536*w+1024}')
    for w in range(2): g(f'ds_read_b128 {reg4("v", VM+6*w)}, v{vVM} offset:{6144+1536*w}\nds_read_b64 {reg2("v", VM+6*w+4)}, v{vVM2} offset:{6144+1536*w+1024}')
    g('s_waitcnt lgkmcnt(8)')
    for w in range(4): g.mfma(reg4('v', SMm), reg4('v', MP+4*w), reg4('v', QP+4*w), None if w else 0)
    g('s_waitcnt lgkmcnt(4)')
    for w in range(4): g.mfma(reg4('v', T+8), reg2('v', MS+2*w), reg2('v', QS_+2*w), None if w else 0, 16)
    g('s_nop 7')
    for r in range(4): g(f'v_add_f32 v{SMm+r}, v{SMm+r}, v{T+8+r}')
    sround(SMm, 4)
    for r in range(4): g(f'v_cndmask_b32 v{SMm+r}, v{T+7}, v{SMm+r}, s[80:81]')
    g(f'v_max3_f32 v{T+5}, v{T+5}, v{SMm}, v{SMm+1}\nv_max3_f32 v{T+4}, v{T+4}, v{SMm+2}, v{SMm+3}\nv_max_f32 v{T+4}, v{T+4}, v{T+5}')
    def bfly(op, a_, b_):
        for sw in ('v_permlane16_swap_b32', 'v_permlane32_swap_b32'): g(f'v_mov_b32 v{b_}, v{a_}\ns_nop 1\n{sw} v{a_}, v{b_}\n{op} v{a_}, v{a_}, v{b_}')
    bfly('v_max_f32', T+4, T+5)
    g(f'v_mul_f32 v{T+4}, {sCE}, v{T+4}\nv_mov_b32 v{T+6}, {sCE}')
    for h in range(6): g(f'v_pk_fma_f32 {reg2("v", S[2*h])}, {reg2("v", S[2*h])}, {reg2("v", T+6)}, {reg2("v", T+4)} op_sel_hi:[1,0,0] neg_lo:[0,0,1] neg_hi:[0,0,1]')
    for r in range(12): g(f'v_exp_f32 v{S[r]}, v{S[r]}')
    g(f'v_pk_add_f32 {reg2("v", T)}, {reg2("v", S[0])}, {reg2("v", S[2])}\nv_pk_add_f32 {reg2("v", T+2)}, {reg2("v", S[4])}, {reg2("v", S[6])}')
    g(f'v_pk_add_f32 {reg2("v", T)}, {reg2("v", T)}, {reg2("v", S[8])}\nv_pk_add_f32 {reg2("v", T+2)}, {reg2("v", T+2)}, {reg2("v", S[10])}')
    g(f'v_pk_add_f32 {reg2("v", T)}, {reg2("v", T)}, {reg2("v", T+2)}\nv_add_f32 v{T}, v{T}, v{T+1}')
    bfly('v_add_f32', T, T+1)
    g(f'v_rcp_f32 v{T}, v{T}\ns_nop 0')
    for h in range(6): g(f'v_pk_mul_f32 {reg2("v", S[2*h])}, {reg2("v", S[2*h])}, {reg2("v", T)} op_sel_hi:[1,0]')
    PX, PM, OA, OP = T + 4, T + 8, QP, KP0
    for h in range(4): g(f'v_cvt_pk_bf16_f32 v{PX+h}, v{S[2*h]}, v{S[2*h]+1}')
    g(f'v_cvt_pk_bf16_f32 v{PM}, v{S[8]}, v{S[9]}\nv_cvt_pk_bf16_f32 v{PM+1}, v{S[10]}, v{S[11]}\ns_waitcnt lgkmcnt(0)')
    for j in range(6): g.mfma(reg4('v', OA+4*j), reg4('v', VF+4*j), reg4('v', PX), 0)
    g('s_nop 0')
    for j in range(6): g.mfma(reg4('v', OA+4*j), reg2('v', VM+2*j), reg2('v', PM), None, 16)
    g('s_nop 2')
    for j in range(6):
        g(f'v_cvt_pk_bf16_f32 v{OP+2*j}, v{OA+4*j}, v{OA+4*j+1}\nv_cvt_pk_bf16_f32 v{OP+2*j+1}, v{OA+4*j+2}, v{OA+4*j+3}')
        if j & 1: g(f'ds_write_b128 v{vOW}, {reg4("v", OP+2*j-2)} offset:{512*(j-1)}')
    g('s_waitcnt lgkmcnt(0)\ns_barrier')
    OF, ACC, PK, LD, RES, R = 32, 80, 112, 160, 120, 124
    for n in range(12): g(f'ds_read_b128 {reg4("v", OF+4*n)}, v{vOR} offset:{1024*n}')
    g(f's_lshr_b32 {sTG}, {sS}, 1\ns_and_b32 {sTG}, {sTG}, 1\ns_xor_b32 {sTG}, {sTG}, 1\ns_and_b32 {sT}, {sS}, 1\ns_mul_i32 {sT}, {sT}, {32*UNIT}\ns_add_u32 s59, {sPW}, {sT}\ns_add_u32 {sT}, {sPR}, {sT}')
    g(f's_cmp_lt_u32 {sS}, 63\ns_cselect_b32 s46, 2048, 0\ns_cselect_b32 s47, {32*HU}, 0\ns_add_u32 {sFQ}, {sFQ}, s46\ns_add_u32 {sQF}, {sQF}, s47\ns_sub_u32 {sBuf}, 36864, {sBuf}')
    g('s_mov_b64 exec, 0xfff\n' + FQL + '\ns_mov_b64 exec, -1')
    g(f'buffer_load_dwordx2 {reg2("v", RES)}, v{vXO}, {INP}, {sRO} offen sc1\ns_waitcnt lgkmcnt(0)')
    out_gemm(g, 6, wreg, OF, ACC, PK, vP, 's59', sTG)
    if p.d_att: g(f's_sleep {p.d_att}')
    loads = []
    for i in range(16):
        loads.append((f's_add_u32 s46, {sT}, {81920*i}\n' if i else f's_mov_b32 s46, {sT}\n') + f'buffer_load_dwordx4 {reg4("v", LD+4*i)}, v{vRD}, {WS}, s46 offen sc1')
    def nextq():
        g('s_mov_b64 exec, 0xfff'); g.flagwait(FQL, [f'v{VT}'], FAIL, pre_issued=True, younger=16); g('s_mov_b64 exec, -1')
        qkv_dma()
    reduce_ln(g, 1, loads, LD, SEL2, sTG, RES, vST, vSR, FAIL, None, R, after_issue=nextq, younger=9)
    g(f's_sub_u32 s46, {sXO}, {X1 - XN1}\nv_mov_b32 v{VT}, 1')
    g(f'buffer_store_dwordx2 {reg2("v", R+20)}, v{vXO}, {WS}, s46 offen sc1\nbuffer_store_dwordx2 {reg2("v", R+16)}, v{vXO}, {WS}, {sXO} offen sc1')
    g(f's_add_u32 {sS}, {sS}, 1\ns_add_u32 {sKM}, {sKM}, {32*HU}\ns_add_u32 {sFK}, {sFK}, 1024\ns_add_u32 {sRO}, {sRO}, {UNIT}\ns_add_u32 {sXO}, {sXO}, {UNIT}')
    g(f's_waitcnt vmcnt(0)\nbuffer_store_dword v{VT}, off, {WS}, {sF1} sc1\ns_add_u32 {sF1}, {sF1}, 512\ns_barrier')
    g(f's_cmp_lt_u32 {sS}, 64\ns_cbranch_scc1 {LT}\ns_endpgm')
    fail_exit(g, FAIL, 2)

def role_ffn(g):
    p = g.p
    FAIL = g.label('failf')
    sL, sJ = 's52', 's53'
    g(f's_lshr_b32 {sL}, {sR}, 4\ns_and_b32 {sJ}, {sR}, 15')
    dA, dB, tA, tB = 16, 20, 26, 29
    dma_offsets(g, dA, 3, 192, 3072, 16, 40)
    g(f's_mul_i32 s46, {sJ}, 192')
    for j in range(3): g(f'v_add_u32 v{dA+j}, s46, v{dA+j}')
    dma_offsets(g, dB, 5, 1280, 1280, 8, 40)
    g(f's_mul_i32 s46, {sJ}, {96*1280}')
    for j in range(5): g(f'v_add_u32 v{dB+j}, s46, v{dB+j}')
    tr_bases(g, tA, 8, 192, 8, 40); g(f's_lshr_b32 s46, {sW}, 1\ns_mul_i32 s57, s46, {32*1280}\ns_mul_i32 s46, s46, 96'); tr_finish(g, tA, 's46')
    tr_bases(g, tB, 4, 1280, 16, 40); g(f's_mul_i32 s46, {sW}, 320'); tr_finish(g, tB, 's46')
    g(f's_mul_i32 s55, {sW}, 3072\ns_mul_i32 s56, {sW}, 10240')
    g.srd('w1', 1966080, 60); g.srd('w2', 1966080, 64)
    pcs = []
    for kp in range(10):
        def reads(slot, kp=kp):
            out = []
            for hk in range(2):
                for t in range(3):
                    b = (t*20 + 2*kp + hk)*4; o = slot + 32*t + hk*32*192
                    out += [tr(reg2('a', b), tA, o), tr(reg2('a', b+2), tA, o + 4*192)]
            return out
        pcs.append(dict(size=12288, wl='s55', srd='s[60:63]', dma=[(f'v{dA+j}', kp*64*3072, None, 1024*j) for j in range(3)], reads=reads))
    def wreg(t, ks):
        i = t*3 + ks
        return ('a', 240 + 4*i) if i < 4 else ('v', 152 + 4*(i-4))
    pcs += wo_pieces(dB, tB, 's[64:67]', 0, [0, 3, 2], wreg, adj='s57')
    weight_pipe(g, pcs, 0, 163840, after_first_barrier=lambda: arrive(g))
    HB, STB = 40960, 49152
    L8, vD, vA, vHW, vHW2, vHR, vP, vRD, vXO, vST, vSR, VT = 1, 2, 4, 3, 6, 7, 8, 10, 11, 12, 13, 14
    SEL2 = 16
    masks(g); consts_sel(g, 24, SEL2, 30); red_masks(g)
    xn_dma_setup(g, vD, vA)
    sTau, sA = 's54', 's55'
    g(f's_and_b32 {sTau}, {sW}, 1\ns_lshr_b32 {sA}, {sW}, 1\nv_lshlrev_b32 v{L8}, 3, v0\nv_lshlrev_b32 v30, 4, v0')
    g(f's_mul_i32 s46, {sTau}, 20480\nv_add_u32 v{vA}, s46, v{vA}\nv_add_u32 v{vA+1}, s46, v{vA+1}')
    g(f'v_add_u32 v{vHR}, {HB}, v30\ns_mul_i32 s46, {sTau}, 3072\ns_lshl_b32 s47, {sA}, 10\ns_add_u32 s47, s47, s46\nv_add_u32 v{vHW}, s47, v{vHR}\ns_lshl_b32 s47, {sA}, 3\ns_add_u32 s47, s47, s46\nv_add_u32 v{vHW2}, s47, v{vHR}')
    g(f'v_and_b32 v31, 15, v0\nv_lshrrev_b32 v32, 4, v0\nv_mul_u32_u24 v33, 1280, v31\nv_lshlrev_b32 v34, 4, v32\nv_add_u32 v33, v33, v34\ns_mul_i32 s46, {sW}, 320\nv_add_u32 v{vP}, s46, v33\nv_add_u32 v{vP+1}, 20480, v{vP}')
    g(f'v_lshrrev_b32 v36, 5, v0\nv_mul_u32_u24 v33, 1280, v36\nv_lshlrev_b32 v34, 4, v31\nv_add3_u32 v33, v33, v34, s46\nv_mov_b32 v35, 0x40000000\nv_cndmask_b32 v35, v35, 0, s[56:57]\nv_add_u32 v33, v33, v35')
    g(f'v_and_b32 v34, 1, v32\nv_mul_u32_u24 v35, 40960, v34\nv_add_u32 v{vRD}, v33, v35\nv_lshlrev_b32 v34, 3, v34\nv_add_u32 v{vXO}, v33, v34')
    g(f'v_lshlrev_b32 v36, 5, v36\nv_add_u32 v{vSR}, {STB}, v36\ns_lshl_b32 s46, {sW}, 3\nv_add_u32 v{vST}, s46, v{vSR}')
    sS, sTG, sF1, sXI, sPW, sPR, sRO, sOO, sFX, sT, sWL = 's70', 's71', 's72', 's73', 's74', 's75', 's76', 's77', 's78', 's79', 's80'
    g(f's_lshl_b32 {sF1}, {sL}, 15\ns_add_u32 {sF1}, {sF1}, {F_X1}\ns_mul_i32 {sXI}, {sL}, {64*UNIT}\ns_add_u32 {sXI}, {sXI}, {XN1}')
    g(f's_mul_i32 {sPR}, {sL}, {32*UNIT}\ns_add_u32 {sPR}, {sPR}, {FP}\ns_mul_i32 {sT}, {sJ}, {UNIT}\ns_add_u32 {sPW}, {sPR}, {sT}\ns_mul_i32 {sOO}, {sJ}, 2560\ns_add_u32 {sPR}, {sPR}, {sOO}')
    g(f's_add_u32 {sRO}, {sXI}, {X1 - XN1}\ns_add_u32 {sRO}, {sRO}, {sOO}')
    g(f's_lshl_b32 {sFX}, {sJ}, 4\ns_lshl_b32 {sT}, {sW}, 2\ns_add_u32 {sFX}, {sFX}, {sT}\ns_add_u32 {sFX}, {sFX}, {F_XN + 64*256}')
    g(f's_mul_i32 {sWL}, {sW}, 10240\ns_mov_b32 {sS}, 0')
    g.srd('out', 2621440)
    gridsync(g, FAIL)
    FR, HA, HF, ACC, PK, LD, RES, R = 24, 56, 24, 48, 80, 24, 88, 96
    LT, LO, LN = g.label('top'), g.label('final'), g.label('next')
    g('.p2align 6')
    g.put(LT)
    g.flagwait(f'buffer_load_dwordx2 {reg2("v", RES)}, v{L8}, {WS}, {sF1} offen sc1', [f'v{RES}', f'v{RES+1}'], FAIL, sleep=1)
    xn_dma(g, vD, sXI, sWL)
    for k in range(2): g(f'buffer_load_dwordx2 {reg2("v", RES+2*k)}, v{vXO}, {WS}, {sRO} offen offset:{160*k} sc1')
    g(f's_lshr_b32 {sTG}, {sS}, 1\ns_and_b32 {sTG}, {sTG}, 1\ns_xor_b32 {sTG}, {sTG}, 1\ns_and_b32 {sT}, {sS}, 1\ns_mul_i32 {sT}, {sT}, {16*UNIT}\ns_add_u32 s59, {sPW}, {sT}\ns_add_u32 {sT}, {sPR}, {sT}')
    g('s_waitcnt vmcnt(2)\ns_barrier')
    def rd(ks): return xn_frag(FR + 4*(ks % 8), vA, 0, ks)
    for ks in range(7): g(rd(ks))
    for ks in range(20):
        g(f's_waitcnt lgkmcnt({min(6, 19 - ks)})')
        for t in range(3):
            g.mfma(reg4('v', HA+4*t), reg4('a', (t*20 + ks)*4), reg4('v', FR + 4*(ks % 8)), None if ks else 0)
            if t == 0 and ks + 7 < 20: g(rd(ks + 7))
    g('s_nop 5')
    for j in range(12): g(f'v_max_f32 v{HA+j}, 0, v{HA+j}')
    for j in range(6): g(f'v_cvt_pk_bf16_f32 v{PK+j}, v{HA+2*j}, v{HA+2*j+1}')
    g(f'ds_write_b128 v{vHW}, {reg4("v", PK)}\nds_write_b64 v{vHW2}, {reg2("v", PK+4)} offset:2048\ns_waitcnt lgkmcnt(0)\ns_barrier')
    for n in range(6): g(f'ds_read_b128 {reg4("v", HF+4*n)}, v{vHR} offset:{1024*n}')
    g('s_waitcnt lgkmcnt(0)')
    out_gemm(g, 3, wreg, HF, ACC, PK, vP, 's59', sTG)
    if p.d_ffn: g(f's_sleep {p.d_ffn}')
    loads = []
    for k in range(2):
        for i in range(8):
            loads.append((f's_add_u32 s46, {sT}, {81920*i}\n' if i else f's_mov_b32 s46, {sT}\n') + f'buffer_load_dwordx4 {reg4("v", LD+32*k+4*i)}, v{vRD}, {WS}, s46 offen offset:{160*k} sc1')
    n0 = len(g.l)
    reduce_ln(g, 2, loads, LD, SEL2, sTG, RES, vST, vSR, FAIL, LO, R)
    k = next(i for i in range(n0, len(g.l)) if g.l[i].strip() == f's_cbranch_scc1 {LO}')
    g.l.insert(k, f'  s_cmp_eq_u32 {sL}, 1')
    g(f's_add_u32 s46, {sOO}, {X2}\ns_add_u32 s47, {sOO}, {XN + 64*UNIT}\nv_mov_b32 v{VT}, 1')
    for k in range(2): g(f'buffer_store_dwordx2 {reg2("v", R+20+2*k)}, v{vXO}, {WS}, s47 offen offset:{160*k} sc1')
    for k in range(2): g(f'buffer_store_dwordx2 {reg2("v", R+16+2*k)}, v{vXO}, {WS}, s46 offen offset:{160*k} sc1')
    g(f's_waitcnt vmcnt(0)\nbuffer_store_dword v{VT}, off, {WS}, {sFX} sc1\ns_branch {LN}')
    g.put(LO)
    for k in range(2): g(f'buffer_store_dwordx2 {reg2("v", R+16+2*k)}, v{vXO}, {INP}, {sOO} offen offset:{160*k}')
    g.put(LN)
    g(f's_add_u32 {sS}, {sS}, 1\ns_add_u32 {sF1}, {sF1}, 512\ns_add_u32 {sXI}, {sXI}, {UNIT}\ns_add_u32 {sRO}, {sRO}, {UNIT}\ns_add_u32 {sOO}, {sOO}, {UNIT}\ns_add_u32 {sFX}, {sFX}, 256')
    g(f's_cmp_lt_u32 {sS}, 64\ns_cbranch_scc1 {LT}\ns_endpgm')
    fail_exit(g, FAIL, 4)

ROLES = dict(chain=role_chain, att=role_att, ffn=role_ffn, qkv=role_qkv)

def build(p):
    g = G(p, False)
    g('s_cmp_ge_u32 s2, 256\ns_cbranch_scc0 L_go\ns_endpgm\nL_go:')
    g('s_load_dwordx16 s[16:31], s[0:1], 0\ns_load_dwordx8 s[32:39], s[0:1], 64\ns_load_dwordx2 s[40:41], s[0:1], 96')
    g(f's_getreg_b32 {sX}, hwreg(HW_REG_XCC_ID, 0, 4)\ns_and_b32 {sX}, {sX}, 7')
    g(f'v_lshrrev_b32 v1, 6, v0\nv_and_b32 v0, 63, v0\ns_mov_b32 {sSPIN}, 0\nv_readfirstlane_b32 {sW}, v1\ns_mov_b32 {sTK}, 0')
    g('s_waitcnt lgkmcnt(0)')
    g.srd('ws', 0x10000000, 4); g.srd('dbg', 256, 8); g.srd('x', 2621440, 12)
    if p.trace is not None: g('s_memrealtime s[46:47]\ns_waitcnt lgkmcnt(0)\ns_mov_b32 s101, s46')
    g(f's_cmp_eq_u32 {sW}, 0\ns_cbranch_scc0 L_norank')
    g(f's_lshl_b32 s46, {sX}, 6\ns_lshl_b32 s47, {sX}, 2\ns_add_u32 s48, s47, 120\ns_add_u32 s47, s47, 172\ns_cmp_ge_u32 {sX}, 2\ns_cselect_b32 s46, s48, s46\ns_cmp_ge_u32 {sX}, 5\ns_cselect_b32 s46, s47, s46')
    g(f's_mov_b64 exec, 1\nv_mov_b32 v2, s46\nv_mov_b32 v3, 1\nbuffer_atomic_add v3, v2, {DBG}, 0 offen sc0 sc1\ns_mov_b64 exec, -1')
    g('L_norank:')
    g(f's_lshl_b32 s46, s2, 2\ns_add_u32 s46, s46, {sW}\ns_mul_i32 s46, s46, {CLR_PER_WAVE*1024}\nv_lshlrev_b32 v1, 4, v0')
    g('s_mov_b32 s47, 0x10000000')
    for i in range(4): g(f'v_mov_b32 v{4+i}, 0')
    for i in range(CLR_PER_WAVE):
        if i and i % 4 == 0: g('s_add_u32 s46, s46, 4096')
        g(f'buffer_store_dwordx4 v[4:7], v1, {WS}, {"s47" if p.noclear else "s46"} offen offset:{1024*(i % 4)} sc1')
    g(f's_cmp_eq_u32 {sW}, 0\ns_cbranch_scc0 L_norank2')
    g(f's_waitcnt vmcnt({CLR_PER_WAVE})\nv_mov_b32 v2, 0\ns_mov_b64 exec, 1\nds_write_b32 v2, v3\ns_waitcnt lgkmcnt(0)\ns_mov_b64 exec, -1')
    g('L_norank2:')
    g(f's_barrier\nv_mov_b32 v2, 0\nds_read_b32 v3, v2\ns_waitcnt lgkmcnt(0)\ns_nop 0\nv_readfirstlane_b32 {sR}, v3\ns_barrier')
    g(f's_min_u32 {sR}, {sR}, 31')
    text = ''
    def dispatch(g):
        order = [(2, 'chain'), (4, 'att'), (5, 'ffn'), (8, 'qkv')]
        for lim, r in order:
            Ln = g.label('nx')
            g(f's_cmp_lt_u32 {sX}, {lim}\ns_cbranch_scc0 {Ln}')
            g(f's_getpc_b64 s[46:47]\nLJ{r}{g.sfx}:\ns_add_u32 s46, s46, R_{r}{g.sfx}-LJ{r}{g.sfx}\ns_addc_u32 s47, s47, 0\ns_setpc_b64 s[46:47]')
            g.put(Ln)
        g('s_endpgm')
        for lim, r in order:
            g('.p2align 6')
            g.put(f'R_{r}{g.sfx}')
            if r in p.roles: ROLES[r](g)
            else:
                g('s_waitcnt vmcnt(0)\ns_barrier'); arrive(g)
                F = g.label('fx'); gridsync(g, F); g.put(F); g('s_endpgm')
    dispatch(g)
    h = G(p, True)
    h('L_SAFE:')
    h(f's_waitcnt vmcnt(0) lgkmcnt(0)\ns_barrier\ns_cmp_eq_u32 {sW}, 0\ns_cbranch_scc0 L_s1\nv_mov_b32 v2, 0\nv_mov_b32 v3, {sTK}\nds_write_b32 v2, v3\ns_waitcnt lgkmcnt(0)\nL_s1:')
    h(f's_barrier\nv_mov_b32 v2, 0\nds_read_b32 v3, v2\ns_waitcnt lgkmcnt(0)\ns_nop 0\nv_readfirstlane_b32 {sTK}, v3\ns_barrier')
    h(f's_lshr_b32 {sX}, {sTK}, 5\ns_and_b32 {sX}, {sX}, 7\ns_and_b32 {sR}, {sTK}, 31')
    h.srd('x', 2621440, 12)
    dispatch(h)
    body = g.text() + h.text()
    bad = hz.check(body)
    assert not bad, 'hazards'
    return wrap(NAME, body, 'grid=(256,1,1) block=(256,1,1) lds=163840', vgpr=512, accum=256)

if __name__ == '__main__':
    p = P()
    open('k.s', 'w').write(build(p))
```

```python
import re
REG = re.compile(r'(?<![\w.])([vas])(?:(\d+)|\[(\d+):(\d+)\])(?![\w])')
TRANS = ('v_exp_f32','v_log_f32','v_rcp_f32','v_rsq_f32','v_sqrt_f32','v_sin_f32','v_cos_f32')
def regs(op):
    out = set()
    for m in REG.finditer(op):
        k = m.group(1)
        if m.group(2) is not None: out.add((k, int(m.group(2))))
        else: out.update((k, i) for i in range(int(m.group(3)), int(m.group(4)) + 1))
    if re.search(r'\bvcc\b', op): out.add(('s', 'vcc'))
    if re.search(r'\bm0\b', op): out.add(('s', 'm0'))
    if re.search(r'\bexec\b', op): out.add(('s', 'exec'))
    return out
class I: pass
def parse(line):
    line = line.split(';')[0].strip()
    if not line or line.startswith('.'): return None
    i = I(); i.text = line
    if line.endswith(':'):
        i.kind = 'label'; i.name = line[:-1]; return i
    p = line.split(None, 1); i.op = p[0]; rest = p[1] if len(p) > 1 else ''
    ops = [o.strip() for o in re.split(r',(?![^\[]*\])', rest)]
    i.ops = ops; op = i.op
    i.w = set(); i.r = set(); i.states = 1
    allr = [regs(o) for o in ops]
    def U(l):
        s = set()
        for x in l: s |= x
        return s
    if op.startswith('v_mfma'):
        i.kind = 'mfma'; i.w = allr[0]; i.ab = allr[1] | allr[2]; i.c = allr[3]; i.r = i.ab | i.c
        i.passes = 8 if '32x32' in op else 4
    elif op.startswith('v_'):
        i.kind = 'valu'
        if 'swap' in op: i.w = U(allr); i.r = U(allr)
        elif op.startswith('v_cmp'): i.w = allr[0]; i.r = U(allr[1:])
        elif '_co_' in op: i.w = allr[0] | allr[1]; i.r = U(allr[2:])
        else:
            i.w = allr[0]; i.r = U(allr[1:])
            if op.startswith(('v_fmac', 'v_mac', 'v_dot2c', 'v_writelane')) or '_dpp' in op or 'row_' in line or 'quad_perm' in line: i.r |= allr[0]
            if op.startswith('v_cndmask') and len(ops) == 3: i.r.add(('s', 'vcc'))
        i.dpp = ('row_' in line) or ('quad_perm' in line) or ('wave_' in line)
    elif op.startswith('buffer_') or op.startswith('global_'):
        i.kind = 'vmem'
        lds = re.search(r'\blds\b', line) is not None
        i.lds = lds
        if 'load' in op and not lds: i.w = allr[0]; i.r = U(allr[1:])
        else:
            i.r = U(allr)
            if 'atomic' in op and 'sc0' in line: i.w = allr[0]
        i.wide = ('store' in op) and (op.endswith('x4') or op.endswith('x3'))
        i.data = allr[0] if i.wide else set()
    elif op.startswith('ds_'):
        i.kind = 'ds'
        if 'read' in op or 'permute' in op or 'swizzle' in op: i.w = allr[0]; i.r = U(allr[1:])
        else: i.r = U(allr)
    elif op.startswith('s_'):
        i.kind = 'salu'
        if op == 's_nop': i.states = int(ops[0], 0) + 1
        if op.startswith(('s_cmp', 's_cbranch', 's_branch', 's_waitcnt', 's_barrier', 's_nop', 's_sleep', 's_setprio', 's_endpgm', 's_setpc', 's_bitcmp')): i.r = U(allr)
        else: i.w = allr[0]; i.r = U(allr[1:])
    else:
        raise ValueError(line)
    return i
def need(p, c):
    n = 0
    k = c.kind
    if p.kind == 'mfma':
        big = {4: 8, 8: 12}[p.passes]
        if k == 'mfma':
            if p.w & c.ab: n = max(n, big)
            if p.w & c.c and not (p.w == c.c and p.op == c.op): n = max(n, big - 2)
            if p.w & c.w and not (p.w == c.c): n = max(n, big - 2)
        elif k in ('valu', 'vmem', 'ds'):
            if p.w & (c.r | c.w): n = max(n, big)
            if k == 'valu' and (p.c & c.w): n = max(n, {4: 3, 8: 7}[p.passes])
    elif p.kind == 'valu':
        vw = {x for x in p.w if x[0] in 'va'}; sw = p.w - vw
        if p.op.startswith('v_dot') and vw & (c.r | c.w) and k in ('valu', 'mfma', 'vmem', 'ds'):
            if not (c.op == p.op and not (vw & (regs(c.ops[1]) | regs(c.ops[2])))): n = max(n, 3)
        if k == 'mfma' and vw & c.r: n = max(n, 2)
        if k == 'mfma' and ('s', 'exec') in sw: n = max(n, 4)
        if k == 'valu':
            if p.op in TRANS and c.op not in TRANS and vw & c.r: n = max(n, 1)
            if 'permlane' in c.op and vw & c.r: n = max(n, 2)
            if c.op.startswith(('v_readfirstlane', 'v_readlane')) and vw & c.r: n = max(n, 1)
            if c.dpp and vw & c.r: n = max(n, 2)
            if sw & c.r: n = max(n, 4 if c.op.startswith(('v_readlane', 'v_writelane')) else 2)
        if k == 'vmem' and sw & c.r: n = max(n, 5)
    elif p.kind == 'vmem':
        if p.wide and p.data & c.w: n = max(n, 2 if k == 'valu' else 1)
    elif p.kind == 'salu':
        if ('s', 'm0') in p.w and k == 'vmem' and c.lds: n = max(n, 1)
    return n
def check(text, verbose=True):
    ins = [x for x in (parse(l) for l in text.split('\n')) if x]
    lab = {x.name: j for j, x in enumerate(ins) if x.kind == 'label'}
    bad = []
    def walk(p, j, dist, depth):
        while j < len(ins) and dist < 21:
            c = ins[j]
            if c.kind == 'label': j += 1; continue
            nd = need(p, c)
            if nd > dist: bad.append((p.text, c.text, nd, dist))
            if c.kind == 'salu':
                if c.op in ('s_endpgm', 's_setpc_b64'): return
                if c.op.startswith(('s_cbranch', 's_branch')):
                    t = c.ops[0]
                    if t in lab and depth < 4: walk(p, lab[t], dist + 1, depth + 1)
                    if c.op == 's_branch': return
            dist += c.states; j += 1
    for j, p in enumerate(ins):
        if p.kind in ('mfma', 'valu', 'vmem') or (p.kind == 'salu' and ('s', 'm0') in p.w):
            walk(p, j + 1, 0, 0)
    seen = set(); out = []
    for b in bad:
        if b[:2] not in seen: seen.add(b[:2]); out.append(b)
    if verbose:
        for b in out[:40]: print('HAZARD need %d have %d:\n    %s\n    %s' % (b[2], b[3], b[0], b[1]))
    return out
if __name__ == '__main__':
    import sys
    t = open(sys.argv[1]).read()
    t = t[t.index('.type'):t.index('.section .rodata')]
    print(len(check(t)), 'hazards')
```

```python
import sys, gen
p = gen.P()
for kv in sys.argv[2:]:
    k, v = kv.split('='); setattr(p, k, eval(v))
ref = open('interleave_layers__memory_aug_recurrent_mem_tr__dense_activation_relu__prompt.s.ref').read().split('\n')
hdr = '\n'.join(l for l in ref[:14]) + '\n'
hdr += '''; Persistent dataflow kernel, one workgroup per CU, role chosen from the XCD the workgroup really runs on (census + device-scope
'''
open(sys.argv[1], 'w').write(hdr + gen.build(p))
```
